```python
import torch

def _softmax(x, axis=-1):
    return torch.softmax(x, dim=axis)
def _gelu(x):
    return torch.nn.functional.gelu(x, approximate="tanh")
def _silu(x):
    return torch.nn.functional.silu(x)
def _sigmoid(x):
    return torch.sigmoid(x)
def _layernorm(x, axis=-1, eps=1e-5):
    m = x.mean(dim=axis, keepdim=True)
    v = x.var(dim=axis, keepdim=True, unbiased=False)
    return (x - m) / torch.sqrt(v + eps)
def _scatter_add(tgt, idx, src, axis=0):
    return tgt.clone().index_add_(axis, idx, src)
def _segment_sum(src, seg, n):
    out = torch.zeros((n,) + src.shape[1:], dtype=src.dtype)
    return out.index_add_(0, seg, src)
def _pad(x, pw):
    flat = tuple(v for pair in reversed(pw) for v in pair)
    return torch.nn.functional.pad(x, flat)

kernel_name = 'interleave_layers__mha_block__glu_gated_bilinear__prompt'

def setup_inputs():

    _w = (lambda a: (lambda t: t.to(torch.bfloat16) if t.is_floating_point() else t)(torch.as_tensor(a)))
    def _A_setup():
        B, S, D, H = 1, 2048, 512, 32
        return {
            "x": _w((lambda *s: torch.randn(*s, dtype=torch.bfloat16) * 0.05)(B, S, D)),
            "wqkv": _w((lambda *s: torch.randn(*s, dtype=torch.bfloat16) * 0.05)(D, 3 * D)),
            "wo": _w((lambda *s: torch.randn(*s, dtype=torch.bfloat16) * 0.05)(D, D)),
        }
    _A_in = _A_setup()

    def _B_setup():
        B, S, D, F = 1, 2048, 512, 1376
        return {
            "x": _w((lambda *s: torch.randn(*s, dtype=torch.bfloat16) * 0.05)(B, S, D)),
            "w_gate": _w((lambda *s: torch.randn(*s, dtype=torch.bfloat16) * 0.4)(D, F) * (D ** -0.5)),
            "w_up": _w((lambda *s: torch.randn(*s, dtype=torch.bfloat16) * 0.4)(D, F) * (D ** -0.5)),
            "w_down": _w((lambda *s: torch.randn(*s, dtype=torch.bfloat16) * 0.4)(F, D) * (F ** -0.5)),
        }
    _B_in = _B_setup()

    return {
        "A_x": _A_in["x"],
        "A_wqkv": _A_in["wqkv"],
        "A_wo": _A_in["wo"],
        "B_x": _B_in["x"],
        "B_w_gate": _B_in["w_gate"],
        "B_w_up": _B_in["w_up"],
        "B_w_down": _B_in["w_down"],
    }

def reference(A_x, A_wqkv, A_wo, B_x, B_w_gate, B_w_up, B_w_down):
    def _A_ref(x, wqkv, wo):
        B, S, D = x.shape
        H = 32
        Dh = D // H
        qkv = (lambda x, *d: x.permute(*d))((x @ wqkv).reshape(B, S, 3, H, Dh), 2, 0, 3, 1, 4)
        q, k, v = qkv[0], qkv[1], qkv[2]
        scores = torch.einsum("bhqd,bhkd->bhqk", q, k) * (Dh ** -0.5)
        p = _softmax(scores, axis=-1)
        o = torch.einsum("bhqk,bhkd->bhqd", p, v)
        return (lambda x, *d: x.permute(*d))(o, 0, 2, 1, 3).reshape(B, S, D) @ wo

    def _B_ref(x, w_gate, w_up, w_down):
        g = torch.einsum("bsd,df->bsf", x, w_gate)
        u = torch.einsum("bsd,df->bsf", x, w_up)
        h = g * u
        return torch.einsum("bsf,fd->bsd", h, w_down)

    x = A_x
    x = x + _A_ref(_layernorm(x, axis=-1), A_wqkv, A_wo)
    x = x + _B_ref(_layernorm(x, axis=-1), B_w_gate, B_w_up, B_w_down)
    x = x + _A_ref(_layernorm(x, axis=-1), A_wqkv, A_wo)
    x = x + _B_ref(_layernorm(x, axis=-1), B_w_gate, B_w_up, B_w_down)
    return x
```

```python
import sys, struct

NAME = "interleave_layers__mha_block__glu_gated_bilinear__prompt"
MB = 1 << 20
XA = 0
XB = 2 * MB
OF = 4 * MB
QF = 6 * MB
KV = 8 * MB
HF = 12 * MB
STA = 18 * MB
STB = 18 * MB + 256 * 1024
CSP = 18 * MB + 512 * 1024
CS_Q, CS_G, CS_U = 0, 1536 * 4, (1536 + 1440) * 4
WS_USED = 19 * MB
A_X, A_WQKV, A_WO, A_BX, A_WG, A_WU, A_WD, A_OUT, A_DBG, A_WS = [8 * i for i in range(10)]

def f32(x):
    return hex(struct.unpack("<I", struct.pack("<f", x))[0])

class Asm:
    def __init__(self):
        self.lines = []
        self.vm = 0
        self.uid = 0
    def e(self, s):
        for l in s.strip("\n").split("\n"):
            l = l.strip()
            if not l:
                continue
            self.lines.append(("" if l.endswith(":") else "    ") + l)
    def vmem(self, s):
        self.e(s)
        self.vm += 1
        return self.vm - 1
    def wait_vm(self, idx, extra=""):
        n = self.vm - idx - 1
        assert n >= 0
        n = min(n, 63)
        self.e(f"s_waitcnt vmcnt({n}){extra}")
    def label(self, base):
        self.uid += 1
        return f"L_{base}_{self.uid}"
    def text(self):
        return "\n".join(self.lines) + "\n"

def srd(a, d, ptr, size):
    a.e(f"s_mov_b32 s{d}, s{ptr}\ns_mov_b32 s{d+1}, s{ptr+1}\ns_mov_b32 s{d+2}, {hex(size)}\ns_mov_b32 s{d+3}, 0x00020000")

def kernel_begin(a, name):
    a.e(f".globl {name}\n.p2align 8\n.type {name},@function\n{name}:")
    a.vm = 0

def kd(name, vgpr, sgpr=96):
    acc = (vgpr + 3) // 4 * 4
    return f""".p2align 6
.amdhsa_kernel {name}
  .amdhsa_next_free_vgpr {vgpr}
  .amdhsa_next_free_sgpr {sgpr}
  .amdhsa_accum_offset {acc}
  .amdhsa_group_segment_fixed_size 0
  .amdhsa_kernarg_size 80
  .amdhsa_user_sgpr_count 2
  .amdhsa_user_sgpr_kernarg_segment_ptr 1
  .amdhsa_system_sgpr_workgroup_id_x 1
.end_amdhsa_kernel
"""

def R(b, n=4):
    return f"v[{b}:{b+n-1}]"

def mfma(d, A, B, C=None):
    c = R(d, 16) if C is None else C
    return f"v_mfma_f32_32x32x16_bf16 {R(d,16)}, {R(A)}, {R(B)}, {c}"

def lane_setup(a, vL=1, sW=16):
    a.e(f"""
    v_and_b32 v{vL}, 63, v0
    v_lshrrev_b32 v2, 6, v0
    s_nop 0
    v_readfirstlane_b32 s{sW}, v2
    """)

def tr_addr(a, vdst, vL, tmp, natural=False):
    a.e(f"""
    v_lshrrev_b32 v{tmp}, 5, v{vL}
    v_lshlrev_b32 v{vdst}, {9 if natural else 8}, v{tmp}
    v_bfe_u32 v{tmp}, v{vL}, 2, 2
    v_lshl_add_u32 v{vdst}, v{tmp}, 6, v{vdst}
    v_bfe_u32 v{tmp}, v{vL}, 4, 1
    v_lshl_add_u32 v{vdst}, v{tmp}, 5, v{vdst}
    v_and_b32 v{tmp}, 3, v{vL}
    v_lshl_add_u32 v{vdst}, v{tmp}, 3, v{vdst}
    """)

def wdma_voff(a, vdst, vL, tmp, ldw, stmp):
    a.e(f"""
    v_lshrrev_b32 v{tmp}, 2, v{vL}
    s_mov_b32 s{stmp}, {ldw}
    v_mul_lo_u32 v{vdst}, v{tmp}, s{stmp}
    v_and_b32 v{tmp}, 3, v{vL}
    v_lshl_add_u32 v{vdst}, v{tmp}, 4, v{vdst}
    """)

def unpack_stats_store(a, P, nP, tmp, vS, vQ, vaddr, srd_ws, soff):
    a.e(f"v_mov_b32 v{vS}, 0\nv_mov_b32 v{vQ}, 0")
    for i in range(nP):
        a.e(f"""
        v_lshlrev_b32 v{tmp}, 16, v{P+i}
        v_and_b32 v{tmp+1}, 0xffff0000, v{P+i}
        v_add_f32 v{vS}, v{vS}, v{tmp}
        v_fmac_f32 v{vQ}, v{tmp}, v{tmp}
        v_add_f32 v{vS}, v{vS}, v{tmp+1}
        v_fmac_f32 v{vQ}, v{tmp+1}, v{tmp+1}
        """)
    a.e(f"""
    s_nop 1
    v_permlane32_swap_b32 v{vS}, v{vQ}
    s_nop 1
    v_add_f32 v{vS}, v{vS}, v{vQ}
    """)
    a.vmem(f"buffer_store_dword v{vS}, v{vaddr}, s[{srd_ws}:{srd_ws+3}], s{soff} offen")

def stats_finish(a, ST, vMean, vRstd, tmp):
    for w in (8, 4, 2, 1):
        for i in range(w):
            a.e(f"v_add_f32 v{ST+i}, v{ST+i}, v{ST+i+w}")
    a.e(f"""
    v_mov_b32 v{tmp}, v{ST}
    s_nop 1
    v_permlane32_swap_b32 v{ST}, v{tmp}
    s_nop 1
    """)
    a.e(f"""
    v_mul_f32 v{vMean}, {f32(-1.0/512)}, v{ST}
    v_mul_f32 v{tmp}, {f32(1.0/512)}, v{tmp}
    v_fma_f32 v{tmp}, -v{vMean}, v{vMean}, v{tmp}
    v_max_f32 v{tmp}, 0, v{tmp}
    v_add_f32 v{tmp}, {f32(1e-5)}, v{tmp}
    v_rsq_f32 v{vRstd}, v{tmp}
    s_nop 0
    """)

def split_hilo(a, vsrc, vdst, tmp, mode):
    a.e(f"""
    v_cvt_pk_bf16_f32 v{vdst}, v{vsrc}, v{vsrc}
    v_and_b32 v{tmp}, 0xffff0000, v{vdst}
    v_sub_f32 v{tmp}, v{vsrc}, v{tmp}
    """)
    if mode == "tok":
        a.e(f"v_cvt_pk_bf16_f32 v{vdst+1}, v{tmp}, 0")
    else:
        a.e(f"v_cvt_pk_bf16_f32 v{vdst}, v{vsrc}, v{tmp}\nv_mov_b32 v{vdst+1}, 0")
    a.e(f"v_mov_b32 v{vdst+2}, 0\nv_mov_b32 v{vdst+3}, 0")

def gen_prep(a):
    name = "prep_kernel"
    kernel_begin(a, name)
    L_end = a.label("end")
    a.e(f"""
    s_cmp_ge_u32 s2, 256
    s_cbranch_scc1 {L_end}
    s_load_dwordx2 s[4:5], s[0:1], {A_X}
    s_load_dwordx2 s[6:7], s[0:1], {A_WS}
    s_load_dwordx2 s[20:21], s[0:1], {A_WQKV}
    s_load_dwordx4 s[24:27], s[0:1], {A_WG}
    """)
    lane_setup(a)
    a.e("s_waitcnt lgkmcnt(0)")
    srd(a, 8, 4, 2 * MB)
    srd(a, 12, 6, WS_USED)
    a.e(f"""
    s_lshr_b32 s17, s2, 2
    s_and_b32 s18, s2, 3
    s_lshl_b32 s18, s18, 2
    s_add_u32 s18, s18, s16          ; subtile 0..15
    v_and_b32 v2, 31, v1
    v_lshrrev_b32 v3, 5, v1
    v_lshlrev_b32 v4, 10, v2
    v_lshl_add_u32 v4, v3, 3, v4     ; t*1024 + hh*8
    s_lshl_b32 s19, s17, 15
    s_lshl_b32 s28, s18, 6
    s_add_u32 s19, s19, s28
    """)
    for i in range(4):
        a.vmem(f"buffer_load_dwordx2 v[{8+2*i}:{9+2*i}], v4, s[8:11], s19 offen offset:{16*i}")
    last_x = a.vm - 1
    L_nocs = a.label("nocs")
    L_cs2 = a.label("cs2")
    a.e(f"""
    s_cmp_lt_u32 s2, 134
    s_cselect_b32 s30, 1, 0
    s_cmp_eq_u32 s16, 3
    s_cselect_b32 s30, s30, 0
    """)
    a.wait_vm(last_x)
    a.e(f"""
    v_lshlrev_b32 v5, 4, v1
    s_lshl_b32 s19, s17, 15
    s_lshl_b32 s28, s18, 11
    s_add_u32 s19, s19, s28
    s_add_u32 s19, s19, {XA}
    """)
    a.vmem("buffer_store_dwordx4 v[8:11], v5, s[12:15], s19 offen")
    a.vmem("buffer_store_dwordx4 v[12:15], v5, s[12:15], s19 offen offset:1024")
    a.e(f"""
    s_lshl_b32 s19, s17, 12
    s_lshr_b32 s28, s18, 2
    s_lshl_b32 s28, s28, 10
    s_add_u32 s19, s19, s28
    s_and_b32 s28, s18, 3
    s_lshl_b32 s28, s28, 2
    s_add_u32 s19, s19, s28
    s_add_u32 s19, s19, {STA}
    """)
    unpack_stats_store(a, 8, 8, 16, 18, 19, 5, 12, 19)
    a.e(f"""
    s_cmp_eq_u32 s30, 0
    s_cbranch_scc1 {L_end}
    """)
    L_g = a.label("csg"); L_u = a.label("csu"); L_go = a.label("csgo")
    a.e(f"""
    s_cmp_lt_u32 s2, 48
    s_cbranch_scc0 {L_g}
    s_mov_b32 s32, s20
    s_mov_b32 s33, s21
    s_mov_b32 s34, {512*3072}
    s_mov_b32 s36, 3072
    s_lshl_b32 s37, s2, 6
    s_lshl_b32 s38, s2, 7
    s_add_u32 s38, s38, {CSP + CS_Q}
    s_branch {L_go}
{L_g}:
    s_mov_b32 s34, {512*2752}
    s_mov_b32 s36, 2752
    s_cmp_lt_u32 s2, 91
    s_cbranch_scc0 {L_u}
    s_mov_b32 s32, s24
    s_mov_b32 s33, s25
    s_sub_u32 s39, s2, 48
    s_lshl_b32 s37, s39, 6
    s_lshl_b32 s38, s39, 7
    s_add_u32 s38, s38, {CSP + CS_G}
    s_branch {L_go}
{L_u}:
    s_mov_b32 s32, s26
    s_mov_b32 s33, s27
    s_sub_u32 s39, s2, 91
    s_lshl_b32 s37, s39, 6
    s_lshl_b32 s38, s39, 7
    s_add_u32 s38, s38, {CSP + CS_U}
{L_go}:
    s_mov_b32 s35, 0x00020000
    v_lshrrev_b32 v6, 2, v1
    v_mul_lo_u32 v6, v6, s36
    v_and_b32 v7, 3, v1
    v_lshl_add_u32 v6, v7, 4, v6
    s_lshl_b32 s39, s36, 4           ; 16 rows
    s_mov_b32 m0, 0
    """)
    first = a.vm
    for ks in range(32):
        a.e(f"s_mov_b32 m0, {ks*1024}\ns_nop 0")
        a.vmem("buffer_load_dwordx4 v6, s[32:35], s37 offen lds")
        a.e("s_add_u32 s37, s37, s39")
    tr_addr(a, 7, 1, 20)
    for i in range(4):
        a.e(f"v_mov_b32 v{24+i}, 0x3f803f80")
    for ks in range(32):
        a.wait_vm(first + ks)
        a.e(f"ds_read_b64_tr_b16 v[28:29], v7 offset:{ks*1024}\nds_read_b64_tr_b16 v[30:31], v7 offset:{ks*1024+512}\ns_waitcnt lgkmcnt(0)")
        a.e(mfma(32, 24, 28, "0" if ks == 0 else None))
        a.e("s_nop 7")
    a.e("s_nop 15")
    split_hilo(a, 32, 48, 52, "hl")
    a.e(f"""
    v_lshlrev_b32 v6, 2, v1
    s_mov_b32 exec_lo, -1
    s_mov_b32 exec_hi, 0
    """)
    a.vmem("buffer_store_dword v48, v6, s[12:15], s38 offen")
    a.e(f"{L_end}:\ns_endpgm")
    return kd(name, 64)

class FragPipe:
    def __init__(self, a, base, D, frags, second=512):
        self.a, self.base, self.D, self.frags, self.second = a, base, D, frags, second
        self.issued = 0
    def slot(self, g):
        return self.base + 4 * (g % self.D)
    def issue(self):
        g = self.issued
        if g >= len(self.frags):
            return False
        va, off = self.frags[g]
        s = self.slot(g)
        self.a.e(f"ds_read_b64_tr_b16 v[{s}:{s+1}], v{va} offset:{off}\nds_read_b64_tr_b16 v[{s+2}:{s+3}], v{va} offset:{off+self.second}")
        self.issued += 1
        return True
    def wait(self, g):
        n = 2 * (self.issued - g - 1)
        self.a.e(f"s_waitcnt lgkmcnt({n})")

def ln_consumer_prologue(a, srd_ws, st_off_expr_sreg, vL16, ST):
    idx = None
    for q in range(4):
        idx = a.vmem(f"buffer_load_dwordx4 {R(ST+4*q)}, v{vL16}, s[{srd_ws}:{srd_ws+3}], s{st_off_expr_sreg} offen offset:{1024*q}")
    return idx

def gen_qkv(a):
    name = "qkv_kernel"
    kernel_begin(a, name)
    L_end = a.label("end")
    a.e(f"""
    s_cmp_ge_u32 s2, 256
    s_cbranch_scc1 {L_end}
    s_load_dwordx2 s[4:5], s[0:1], {A_WQKV}
    s_load_dwordx2 s[6:7], s[0:1], {A_WS}
    """)
    lane_setup(a)
    vL, vL16, vW, vTR, vTR2 = 1, 3, 4, 5, 6
    ACC = 8
    FR = 56
    ST = 80
    CS = 96
    TMP = 100
    TOK = 112
    D = 6
    a.e(f"v_lshlrev_b32 v{vL16}, 4, v{vL}")
    wdma_voff(a, vW, vL, 2, 3072, 30)
    tr_addr(a, vTR, vL, 2)
    a.e(f"v_add_u32 v{vTR2}, 0x10000, v{vTR}")
    a.e(f"""
    s_and_b32 s17, s2, 7
    s_lshr_b32 s18, s2, 3
    s_lshr_b32 s19, s17, 1
    s_lshl_b32 s19, s19, 2
    s_and_b32 s20, s18, 3
    s_add_u32 s19, s19, s20          ; rb
    s_and_b32 s20, s17, 1
    s_lshl_b32 s20, s20, 3
    s_lshr_b32 s21, s18, 2
    s_add_u32 s20, s20, s21          ; ct
    s_lshl_b32 s19, s19, 2
    s_add_u32 s19, s19, s16          ; tb
    s_lshl_b32 s22, s19, 15
    s_add_u32 s22, s22, {XA}         ; token soffset
    s_mul_i32 s23, s16, {16*3072}
    s_lshl_b32 s24, s20, 6
    s_add_u32 s23, s23, s24
    s_mul_i32 s24, s16, 3072
    s_lshl_b32 s25, s19, 12
    s_add_u32 s25, s25, {STA}
    s_lshl_b32 s26, s20, 7
    s_add_u32 s26, s26, {CSP + CS_Q}
    s_waitcnt lgkmcnt(0)
    """)
    srd(a, 8, 4, 512 * 3072)
    srd(a, 12, 6, WS_USED)
    chunk_last = []
    for c in range(8):
        a.e(f"s_mov_b32 m0, s24\ns_add_u32 s24, s24, {4*3072}")
        for sub in range(3):
            a.vmem(f"buffer_load_dwordx4 v{vW}, s[8:11], s23 offen offset:{1024*sub} lds")
        a.e(f"s_add_u32 s23, s23, {4*16*3072}")
        for k in range(4):
            i = a.vmem(f"buffer_load_dwordx4 {R(TOK+16*c+4*k)}, v{vL16}, s[12:15], s22 offen offset:{1024*k}")
        a.e("s_add_u32 s22, s22, 4096")
        chunk_last.append(i)
    ln_consumer_prologue(a, 12, 25, vL16, ST)
    a.e(f"""
    v_lshlrev_b32 v{TMP}, 2, v{vL}
    v_lshrrev_b32 v{TMP+1}, 5, v{vL}
    v_lshl_add_u32 v{TMP}, v{TMP+1}, 30, v{TMP}
    """)
    for sub in range(3):
        last_aux = a.vmem(f"buffer_load_dword v{CS+sub}, v{TMP}, s[12:15], s26 offen offset:{2048*sub}" if sub < 2 else
                          f"buffer_load_dword v{CS+sub}, v{TMP}, s[12:15], s27 offen")
        if sub == 1:
            a.e("s_add_u32 s27, s26, 4096")
    frags = []
    for ks in range(32):
        for sub in range(3):
            off = (ks * 3 + sub) * 1024
            frags.append((vTR, off) if off < 65536 else (vTR2, off - 65536))
    fp = FragPipe(a, FR, D, frags)
    def ensure_chunk(g):
        c = g // 12
        if g % 12 == 0 and g < len(frags):
            a.wait_vm(chunk_last[c])
            a.e("s_barrier")
    for g in range(D):
        ensure_chunk(fp.issued); fp.issue()
    for g in range(96):
        ks, sub = divmod(g, 3)
        fp.wait(g)
        tok = TOK + 4 * ks
        C = "0" if ks == 0 else None
        if sub < 2:
            a.e(mfma(ACC + 16 * sub, fp.slot(g), tok, C))
        else:
            a.e(mfma(ACC + 16 * sub, tok, fp.slot(g), C))
        ensure_chunk(fp.issued); fp.issue()
    a.wait_vm(last_aux)
    vMean, vRstd = TMP, TMP + 1
    stats_finish(a, ST, vMean, vRstd, TMP + 2)
    TK = ST + 4
    split_hilo(a, vMean, TK, TMP + 2, "tok")
    for sub in range(3):
        s = FR + 4 * sub
        a.e(f"v_mov_b32 v{s}, v{CS+sub}\nv_and_b32 v{s+1}, 0xffff, v{CS+sub}\nv_mov_b32 v{s+2}, 0\nv_mov_b32 v{s+3}, 0")
    RO = ST + 8; ON = ST + 12
    a.e(f"""
    v_cmp_gt_u32 vcc, 32, v{vL}
    s_nop 1
    v_cndmask_b32 v{TMP+3}, 0, v{vRstd}, vcc
    """)
    split_hilo(a, TMP + 3, RO, TMP + 2, "hl")
    for i in range(4):
        a.e(f"v_mov_b32 v{ON+i}, 0x3f803f80")
    a.e("s_nop 1")
    a.e(mfma(ACC, FR, TK))
    a.e(mfma(ACC + 16, FR + 4, TK))
    a.e(mfma(ACC + 32, TK, FR + 8))
    RB = TOK
    a.e(mfma(RB, RO, ON, "0"))
    a.e(f"v_mul_f32 v{TMP+4}, {f32(0.25*1.4426950408889634)}, v{vRstd}")
    a.e(f"""
    s_lshl_b32 s28, s20, 17
    s_lshl_b32 s29, s19, 10
    s_add_u32 s28, s28, s29
    s_add_u32 s28, s28, {QF}
    s_add_u32 s29, s28, 0x10000
    s_lshl_b32 s30, s20, 18
    s_lshl_b32 s31, s19, 11
    s_add_u32 s30, s30, s31
    s_add_u32 s30, s30, {KV}
    s_add_u32 s31, s30, 0x20000
    v_bfe_u32 v{TMP+5}, v{vL}, 4, 1
    v_lshlrev_b32 v{TMP+5}, 17, v{TMP+5}
    v_lshrrev_b32 v{TMP+6}, 5, v{vL}
    v_lshl_add_u32 v{TMP+5}, v{TMP+6}, 8, v{TMP+5}
    v_and_b32 v{TMP+6}, 15, v{vL}
    v_lshl_add_u32 v{TMP+5}, v{TMP+6}, 4, v{TMP+5}
    s_nop 7
    """)
    PK = TOK + 16
    for sub in range(3):
        for r in range(16):
            sc = (TMP + 4, vRstd, RB + r)[sub]
            a.e(f"v_mul_f32 v{ACC+16*sub+r}, v{ACC+16*sub+r}, v{sc}")
        p = PK + 8 * sub
        for r in range(8):
            a.e(f"v_cvt_pk_bf16_f32 v{p+r}, v{ACC+16*sub+2*r}, v{ACC+16*sub+2*r+1}")
        if sub == 0:
            a.vmem(f"buffer_store_dwordx4 {R(p)}, v{vL16}, s[12:15], s28 offen")
            a.vmem(f"buffer_store_dwordx4 {R(p+4)}, v{vL16}, s[12:15], s29 offen")
        elif sub == 1:
            a.vmem(f"buffer_store_dwordx4 {R(p)}, v{vL16}, s[12:15], s30 offen")
            a.vmem(f"buffer_store_dwordx4 {R(p+4)}, v{vL16}, s[12:15], s31 offen")
        else:
            a.vmem(f"buffer_store_dwordx4 {R(p)}, v{TMP+5}, s[12:15], s30 offen offset:1024")
            a.vmem(f"buffer_store_dwordx4 {R(p+4)}, v{TMP+5}, s[12:15], s30 offen offset:1536")
    a.e(f"{L_end}:\ns_endpgm")
    return kd(name, 240)

def gen_attn(a):
    name = "attn_kernel"
    kernel_begin(a, name)
    L_end = a.label("end")
    a.e(f"""
    s_cmp_ge_u32 s2, 256
    s_cbranch_scc1 {L_end}
    s_load_dwordx2 s[6:7], s[0:1], {A_WS}
    """)
    lane_setup(a)
    vL, vL16, vK, vV = 1, 3, 4, 5
    Q = 8; KF = 12
    VF = 20
    P = 36
    S = 44
    O = 76
    C = 92
    TMP = 108
    a.e(f"""
    v_lshlrev_b32 v{vL16}, 4, v{vL}
    s_and_b32 s17, s2, 7
    s_lshr_b32 s18, s2, 3
    s_lshl_b32 s17, s17, 2
    s_and_b32 s19, s18, 3
    s_add_u32 s17, s17, s19          ; head
    s_lshr_b32 s18, s18, 2           ; qb
    s_lshl_b32 s18, s18, 3
    s_add_u32 s18, s18, s16
    s_lshl_b32 s19, s17, 17
    s_lshl_b32 s20, s16, 11
    s_add_u32 s19, s19, s20
    s_add_u32 s19, s19, {KV}
    s_lshl_b32 s21, s17, 16
    s_lshl_b32 s22, s18, 10
    s_add_u32 s21, s21, s22
    s_add_u32 s21, s21, {QF}
    s_waitcnt lgkmcnt(0)
    """)
    srd(a, 12, 6, WS_USED)
    iq = a.vmem(f"buffer_load_dwordx4 {R(Q)}, v{vL16}, s[12:15], s21 offen")
    ch = []
    for c in range(8):
        a.e(f"s_mov_b32 m0, s20\ns_add_u32 s20, s20, 16384")
        a.vmem(f"buffer_load_dwordx4 v{vL16}, s[12:15], s19 offen lds")
        ch.append(a.vmem(f"buffer_load_dwordx4 v{vL16}, s[12:15], s19 offen offset:1024 lds"))
        a.e("s_add_u32 s19, s19, 16384")
    a.e(f"""
    v_lshrrev_b32 v2, 5, v{vL}
    v_lshlrev_b32 v{vV}, 8, v2
    v_and_b32 v2, 15, v{vL}
    v_lshl_add_u32 v{vV}, v2, 4, v{vV}
    v_add_u32 v{vV}, 1024, v{vV}
    v_mov_b32 v{vK}, v{vL16}
    s_mov_b32 s24, 0x0000ffff
    s_mov_b32 s25, 0x0000ffff
    s_mov_b32 s26, 0
    """)
    for i in range(16):
        a.e(f"v_mov_b32 v{VF+i}, 0x3f803f80\nv_mov_b32 v{C+i}, 0")
    a.wait_vm(ch[1])
    a.e("s_barrier")
    L_pass = a.label("pass"); L_loop = a.label("loop"); L_nobar = a.label("nobar")
    def rdK(t, off):
        a.e(f"ds_read_b128 {R(KF+4*(t&1))}, v{vK} offset:{off}")
    def rdV(t, off):
        a.e(f"s_mov_b64 exec, s[24:25]\nds_read_b128 {R(VF+8*(t&1))}, v{vV} offset:{off}\nds_read_b128 {R(VF+8*(t&1)+4)}, v{vV} offset:{off+512}\ns_mov_b64 exec, -1")
    a.e(f"{L_pass}:")
    for i in range(16):
        a.e(f"v_mov_b32 v{O+i}, 0")
    rdK(0, 0); rdK(1, 2048); rdV(0, 0)
    a.e("s_waitcnt lgkmcnt(3)")
    a.e(mfma(S, KF, Q, R(C, 16)))
    a.e("s_mov_b32 s27, 0\ns_nop 7\ns_nop 3")
    a.e(f"{L_loop}:")
    NT = 8
    for t in range(NT):
        Sc = S + 16 * (t & 1); Sn = S + 16 * ((t + 1) & 1)
        if t == NT - 3:
            a.e(f"""
            s_xor_b32 s28, s27, 1
            s_or_b32 s28, s28, s26
            s_cmp_lg_u32 s28, 0
            s_cbranch_scc1 {L_nobar}
            s_waitcnt vmcnt(0)
            s_barrier
{L_nobar}:
            """)
        a.e("s_waitcnt lgkmcnt(2)")
        a.e(mfma(Sn, KF + 4 * ((t + 1) & 1), Q, R(C, 16)))
        for i in range(8):
            a.e(f"v_exp_f32 v{Sc+i}, v{Sc+i}")
            if i == 1:
                rdK(t, (t + 2) * 2048)
        for i in range(4):
            a.e(f"v_exp_f32 v{Sc+8+2*i}, v{Sc+8+2*i}")
            a.e(f"v_cvt_pk_bf16_f32 v{P+i}, v{Sc+2*i}, v{Sc+2*i+1}")
            a.e(f"v_exp_f32 v{Sc+9+2*i}, v{Sc+9+2*i}")
        a.e("s_waitcnt lgkmcnt(1)")
        a.e(mfma(O, VF + 8 * (t & 1), P))
        for i in range(4):
            a.e(f"v_cvt_pk_bf16_f32 v{P+4+i}, v{Sc+8+2*i}, v{Sc+9+2*i}")
        rdV(t + 1, (t + 1) * 2048)
        a.e(mfma(O, VF + 8 * (t & 1) + 4, P + 4))
    a.e(f"""
    v_add_u32 v{vK}, {NT*2048}, v{vK}
    v_add_u32 v{vV}, {NT*2048}, v{vV}
    s_add_u32 s27, s27, 1
    s_cmp_lt_u32 s27, {64//NT}
    s_cbranch_scc1 {L_loop}
    s_waitcnt lgkmcnt(0)
    s_nop 15
    """)
    L_fin = a.label("fin")
    a.e(f"""
    s_cmp_lg_u32 s26, 0
    s_cbranch_scc1 {L_fin}
    v_max3_f32 v{TMP}, abs(v{O}), abs(v{O+1}), abs(v{O+2})
    v_max3_f32 v{TMP}, v{TMP}, abs(v{O+3}), abs(v{O+4})
    v_max3_f32 v{TMP}, v{TMP}, abs(v{O+5}), abs(v{O+6})
    v_add_f32 v{TMP+1}, v{O}, v{O+1}
    v_add_f32 v{TMP+2}, v{O+2}, v{O+3}
    v_add_f32 v{TMP+3}, v{O+4}, v{O+5}
    v_add_f32 v{TMP+4}, v{O+6}, v{O+7}
    v_max_f32 v{TMP}, v{TMP}, abs(v{O+7})
    v_add_f32 v{TMP+1}, v{TMP+1}, v{TMP+2}
    v_add_f32 v{TMP+3}, v{TMP+3}, v{TMP+4}
    v_add_f32 v{TMP+1}, v{TMP+1}, v{TMP+3}
    s_mov_b32 s28, {f32(2.0**-80)}
    s_mov_b32 s29, {f32(2.0**80)}
    s_mov_b32 s30, {f32(2.0**120)}
    v_cmp_le_f32 s[32:33], s28, v{O+8}
    v_cmp_ge_f32 s[34:35], s29, v{O+8}
    v_cmp_ge_f32 s[36:37], s30, v{TMP}
    v_cmp_o_f32 s[38:39], v{TMP+1}, v{TMP+1}
    s_nop 3
    s_and_b64 s[32:33], s[32:33], s[34:35]
    s_and_b64 s[36:37], s[36:37], s[38:39]
    s_and_b64 s[32:33], s[32:33], s[36:37]
    s_cmp_eq_u64 s[32:33], -1
    s_cbranch_scc1 {L_fin}
    """)
    L_mx = a.label("mx")
    a.e(f"""
    s_mov_b32 s26, 1
    v_mov_b32 v{vK}, v{vL16}
    v_subrev_u32 v{vV}, {64*2048}, v{vV}
    v_mov_b32 v{TMP}, 0xff800000
    s_mov_b32 s27, 0
{L_mx}:
    ds_read_b128 {R(KF)}, v{vK}
    s_waitcnt lgkmcnt(0)
    """)
    a.e(mfma(S, KF, Q, "0"))
    a.e("s_nop 15")
    for i in range(8):
        a.e(f"v_max3_f32 v{TMP}, v{TMP}, v{S+2*i}, v{S+2*i+1}")
    a.e(f"""
    v_add_u32 v{vK}, 2048, v{vK}
    s_add_u32 s27, s27, 1
    s_cmp_lt_u32 s27, 64
    s_cbranch_scc1 {L_mx}
    v_mov_b32 v{TMP+1}, v{TMP}
    s_nop 1
    v_permlane32_swap_b32 v{TMP}, v{TMP+1}
    s_nop 1
    v_max_f32 v{TMP}, v{TMP}, v{TMP+1}
    v_mov_b32 v{vK}, v{vL16}
    """)
    for i in range(16):
        a.e(f"v_sub_f32 v{C+i}, 0, v{TMP}")
    a.e(f"s_branch {L_pass}")
    a.e(f"""
{L_fin}:
    v_rcp_f32 v{TMP}, v{O+8}
    s_lshl_b32 s28, s18, 15
    s_lshl_b32 s29, s17, 10
    s_add_u32 s28, s28, s29
    s_add_u32 s28, s28, {OF}
    """)
    for i in range(8):
        a.e(f"v_mul_f32 v{O+i}, v{O+i}, v{TMP}")
    for i in range(4):
        a.e(f"v_cvt_pk_bf16_f32 v{P+i}, v{O+2*i}, v{O+2*i+1}")
    a.vmem(f"buffer_store_dwordx4 {R(P)}, v{vL16}, s[12:15], s28 offen")
    a.e(f"{L_end}:\ns_endpgm")
    return kd(name, 120)

def gen_proj(a, name, w_arg, w_bytes, KS, src, src_tb_bytes, res, dst, stat, final):
    kernel_begin(a, name)
    L_end = a.label("end")
    a.e(f"""
    s_cmp_ge_u32 s2, 256
    s_cbranch_scc1 {L_end}
    s_load_dwordx2 s[4:5], s[0:1], {w_arg}
    s_load_dwordx2 s[6:7], s[0:1], {A_WS}
    s_load_dwordx2 s[40:41], s[0:1], {A_OUT}
    """)
    lane_setup(a)
    H = KS // 2
    vL, vL16, vW = 1, 3, 4
    vTR = 5
    ACC = 12
    FR = 44
    RES = 68
    TMP = 76
    TOK = 84
    D = 6
    NSLOT = min(H, 36)
    HALF_BYTES = NSLOT * 2048
    XCH = 2 * HALF_BYTES
    lds_bytes = XCH + 16384
    a.e(f"v_lshlrev_b32 v{vL16}, 4, v{vL}")
    wdma_voff(a, vW, vL, 2, 1024, 30)
    tr_addr(a, vTR, vL, 2)
    a.e(f"""
    s_and_b32 s17, s2, 7
    s_lshr_b32 s18, s2, 3
    s_lshr_b32 s19, s17, 1
    s_lshl_b32 s19, s19, 3
    s_and_b32 s20, s18, 7
    s_add_u32 s19, s19, s20          ; rb (64-token block)
    s_and_b32 s20, s17, 1
    s_lshl_b32 s20, s20, 2
    s_lshr_b32 s21, s18, 3
    s_add_u32 s20, s20, s21
    s_and_b32 s21, s16, 1            ; token sub-block
    s_lshr_b32 s22, s16, 1           ; kh
    s_lshl_b32 s19, s19, 1
    s_add_u32 s19, s19, s21          ; tb
    s_mul_i32 s23, s19, {src_tb_bytes}
    s_mul_i32 s24, s22, {H*1024}
    s_add_u32 s23, s23, s24
    s_add_u32 s23, s23, {src}        ; token soffset
    s_mul_i32 s24, s22, {H*16*1024}
    s_lshl_b32 s25, s20, 7
    s_add_u32 s24, s24, s25
    s_lshl_b32 s25, s21, 6
    s_add_u32 s24, s24, s25          ; W soffset
    s_mul_i32 s25, s22, {HALF_BYTES}
    s_lshl_b32 s26, s21, 10
    s_add_u32 s25, s25, s26          ; m0 base
    s_mul_i32 s26, s22, {HALF_BYTES + 1024}
    s_mul_i32 s27, s22, {HALF_BYTES - 1024}
    s_add_u32 s27, s27, 1024
    v_add_u32 v{vTR+1}, s27, v{vTR}
    v_add_u32 v{vTR}, s26, v{vTR}
    v_add_u32 v{vTR+2}, 0x10000, v{vTR}
    v_add_u32 v{vTR+3}, 0x10000, v{vTR+1}
    s_lshl_b32 s28, s20, 1
    s_add_u32 s28, s28, s22
    s_lshl_b32 s29, s19, 15
    s_lshl_b32 s30, s28, 11
    s_add_u32 s29, s29, s30
    s_add_u32 s30, s29, {res}
    s_waitcnt lgkmcnt(0)
    """)
    srd(a, 8, 4, w_bytes)
    srd(a, 12, 6, WS_USED)
    CH = 4
    nch = (H + CH - 1) // CH
    chunk_last = [None] * nch
    def issue_chunk(c):
        for j in range(c * CH, min(H, (c + 1) * CH)):
            slot = j % NSLOT
            a.e(f"s_add_u32 m0, s25, {slot*2048}\ns_nop 0")
            a.vmem(f"buffer_load_dwordx4 v{vW}, s[8:11], s24 offen lds")
            a.e(f"s_add_u32 s24, s24, {16*1024}")
        for j in range(c * CH, min(H, (c + 1) * CH)):
            i = a.vmem(f"buffer_load_dwordx4 {R(TOK+4*j)}, v{vL16}, s[12:15], s23 offen offset:{1024*(j%CH)}")
        a.e("s_add_u32 s23, s23, 4096")
        chunk_last[c] = i
    UP = min(nch, 7)
    for c in range(UP):
        issue_chunk(c)
        if c == 1:
            a.vmem(f"buffer_load_dwordx4 {R(RES)}, v{vL16}, s[12:15], s30 offen")
            res_last = a.vmem(f"buffer_load_dwordx4 {R(RES+4)}, v{vL16}, s[12:15], s30 offen offset:1024")
    frags = []
    for j in range(H):
        for i in range(2):
            off = (j % NSLOT) * 2048
            frags.append((vTR + i, off) if off < 65536 else (vTR + 2 + i, off - 65536))
    fp = FragPipe(a, FR, D, frags)
    nxt = [UP]
    def ensure_chunk(g):
        c = g // (2 * CH)
        if g % (2 * CH) == 0 and g < len(frags):
            a.wait_vm(chunk_last[c])
            a.e("s_barrier")
            if nxt[0] < nch and c >= 1:
                need_free = nxt[0] - NSLOT // CH
                if need_free <= c - 2:
                    issue_chunk(nxt[0]); nxt[0] += 1
    for g in range(D):
        ensure_chunk(fp.issued); fp.issue()
    for g in range(2 * H):
        j, i = divmod(g, 2)
        fp.wait(g)
        a.e(mfma(ACC + 16 * i, fp.slot(g), TOK + 4 * j, "0" if j == 0 else None))
        ensure_chunk(fp.issued); fp.issue()
    assert nxt[0] == nch
    a.e(f"""
    s_lshl_b32 s31, s16, 12
    s_xor_b32 s32, s31, 0x2000
    s_add_u32 s31, s31, {XCH}
    s_add_u32 s32, s32, {XCH}
    v_add_u32 v{TMP}, s31, v{vL16}
    v_add_u32 v{TMP+1}, s32, v{vL16}
    s_nop 15
    """)
    for q in range(4):
        a.e(f"ds_write_b128 v{TMP}, {R(ACC+16+4*q)} offset:{1024*q}")
    a.e("s_waitcnt lgkmcnt(0)\ns_barrier")
    for q in range(4):
        a.e(f"ds_read_b128 {R(ACC+16+4*q)}, v{TMP+1} offset:{1024*q}")
    a.wait_vm(res_last)
    for r in range(8):
        a.e(f"""
        v_lshlrev_b32 v{TMP+2}, 16, v{RES+r}
        v_and_b32 v{TMP+3}, 0xffff0000, v{RES+r}
        v_add_f32 v{ACC+2*r}, v{ACC+2*r}, v{TMP+2}
        v_add_f32 v{ACC+2*r+1}, v{ACC+2*r+1}, v{TMP+3}
        """)
    a.e("s_waitcnt lgkmcnt(0)")
    for r in range(16):
        a.e(f"v_add_f32 v{ACC+r}, v{ACC+r}, v{ACC+16+r}")
    PK = FR
    for r in range(8):
        a.e(f"v_cvt_pk_bf16_f32 v{PK+r}, v{ACC+2*r}, v{ACC+2*r+1}")
    if not final:
        a.e(f"s_add_u32 s29, s29, {dst}")
        a.vmem(f"buffer_store_dwordx4 {R(PK)}, v{vL16}, s[12:15], s29 offen")
        a.vmem(f"buffer_store_dwordx4 {R(PK+4)}, v{vL16}, s[12:15], s29 offen offset:1024")
        a.e(f"""
        s_lshl_b32 s33, s19, 12
        s_lshr_b32 s34, s28, 2
        s_lshl_b32 s34, s34, 10
        s_add_u32 s33, s33, s34
        s_and_b32 s34, s28, 3
        s_lshl_b32 s34, s34, 2
        s_add_u32 s33, s33, s34
        s_add_u32 s33, s33, {stat}
        """)
        unpack_stats_store(a, PK, 8, TMP + 2, TMP + 4, TMP + 5, vL16, 12, 33)
    else:
        srd(a, 36, 40, 2 * MB)
        a.e(f"""
        v_and_b32 v{TMP}, 31, v{vL}
        v_lshlrev_b32 v{TMP}, 10, v{TMP}
        v_lshrrev_b32 v{TMP+1}, 5, v{vL}
        v_lshl_add_u32 v{TMP}, v{TMP+1}, 4, v{TMP}
        s_lshl_b32 s33, s19, 15
        s_lshl_b32 s34, s28, 6
        s_add_u32 s33, s33, s34
        v_permlane32_swap_b32 v{PK}, v{PK+2}
        v_permlane32_swap_b32 v{PK+1}, v{PK+3}
        v_permlane32_swap_b32 v{PK+4}, v{PK+6}
        v_permlane32_swap_b32 v{PK+5}, v{PK+7}
        """)
        a.vmem(f"buffer_store_dwordx4 {R(PK)}, v{TMP}, s[36:39], s33 offen")
        a.vmem(f"buffer_store_dwordx4 {R(PK+4)}, v{TMP}, s[36:39], s33 offen offset:32")
    a.e(f"{L_end}:\ns_endpgm")
    return kd(name, TOK + 4 * H), lds_bytes

def gen_gu(a):
    name = "gu_kernel"
    kernel_begin(a, name)
    L_end = a.label("end")
    a.e(f"""
    s_cmp_ge_u32 s2, 256
    s_cbranch_scc1 {L_end}
    s_and_b32 s17, s2, 7
    s_lshr_b32 s18, s2, 3
    s_and_b32 s20, s17, 3
    s_lshl_b32 s20, s20, 2
    s_lshr_b32 s21, s18, 3
    s_add_u32 s20, s20, s21          ; cg
    s_cmp_ge_u32 s20, 15
    s_cbranch_scc1 {L_end}
    s_load_dwordx4 s[4:7], s[0:1], {A_WG}
    s_load_dwordx2 s[40:41], s[0:1], {A_WS}
    """)
    lane_setup(a)
    vL, vL16, vW = 1, 3, 4
    vTR = 5
    ACC = 8
    FR = 104
    ST = 128
    CS = 144
    TMP = 150
    TOK = 160
    NTOK = 24
    D = 6
    NSC = 6
    a.e(f"v_lshlrev_b32 v{vL16}, 4, v{vL}")
    wdma_voff(a, vW, vL, 2, 2752, 30)
    tr_addr(a, vTR, vL, 2)
    a.e(f"""
    v_add_u32 v{vTR+1}, 0x10000, v{vTR}
    v_add_u32 v{vTR+2}, 0x20000, v{vTR}
    s_lshr_b32 s19, s17, 2
    s_lshl_b32 s19, s19, 3
    s_and_b32 s21, s18, 7
    s_add_u32 s19, s19, s21          ; rb
    s_lshl_b32 s19, s19, 2
    s_add_u32 s19, s19, s16          ; tb
    s_lshl_b32 s22, s19, 15
    s_add_u32 s22, s22, {XB}         ; token soffset
    s_mul_i32 s23, s16, {16*2752}
    s_mul_i32 s24, s20, 192
    s_add_u32 s23, s23, s24
    s_mul_i32 s24, s16, 6144
    s_lshl_b32 s25, s19, 12
    s_add_u32 s25, s25, {STB}
    s_mul_i32 s26, s20, 384
    s_add_u32 s27, s26, {CSP + CS_U}
    s_add_u32 s26, s26, {CSP + CS_G}
    s_waitcnt lgkmcnt(0)
    """)
    srd(a, 8, 4, 512 * 2752)
    srd(a, 36, 6, 512 * 2752)
    srd(a, 12, 40, WS_USED)
    chunk_last = [None] * 8
    def issue_chunk(c):
        base = (c % NSC) * 24576
        for sub in range(3):
            for gu in range(2):
                a.e(f"s_add_u32 m0, s24, {base + (sub*2+gu)*1024 - 64*sub}\ns_nop 0")
                a.vmem(f"buffer_load_dwordx4 v{vW}, s[{8 if gu == 0 else 36}:{11 if gu == 0 else 39}], s23 offen offset:{64*sub} lds")
        a.e(f"s_add_u32 s23, s23, {4*16*2752}")
        for k in range(4):
            i = a.vmem(f"buffer_load_dwordx4 {R(TOK+4*((4*c+k)%NTOK))}, v{vL16}, s[12:15], s22 offen offset:{1024*k}")
        a.e("s_add_u32 s22, s22, 4096")
        chunk_last[c] = i
    for c in range(5):
        issue_chunk(c)
    ln_consumer_prologue(a, 12, 25, vL16, ST)
    a.e(f"""
    v_lshlrev_b32 v{TMP}, 2, v{vL}
    v_lshrrev_b32 v{TMP+1}, 5, v{vL}
    v_lshl_add_u32 v{TMP}, v{TMP+1}, 30, v{TMP}
    """)
    for sub in range(3):
        for gu in range(2):
            last_aux = a.vmem(f"buffer_load_dword v{CS+2*sub+gu}, v{TMP}, s[12:15], s{26+gu} offen offset:{128*sub}")
    frags = []
    for ks in range(32):
        for f in range(6):
            off = ((ks // 4) % NSC) * 24576 + ((ks % 4) * 6 + f) * 1024
            frags.append((vTR + off // 65536, off % 65536))
    fp = FragPipe(a, FR, D, frags)
    nxt = [5]
    def ensure_chunk(g):
        c = g // 24
        if g % 24 == 0 and g < len(frags):
            a.wait_vm(chunk_last[c])
            a.e("s_barrier")
            if nxt[0] < 8 and c >= 1:
                if nxt[0] - NSC <= c - 2:
                    issue_chunk(nxt[0]); nxt[0] += 1
    for g in range(D):
        ensure_chunk(fp.issued); fp.issue()
    for g in range(192):
        ks, f = divmod(g, 6)
        fp.wait(g)
        a.e(mfma(ACC + 16 * f, fp.slot(g), TOK + 4 * (ks % NTOK), "0" if ks == 0 else None))
        ensure_chunk(fp.issued); fp.issue()
    assert nxt[0] == 8
    a.wait_vm(last_aux)
    vMean, vRstd = TMP, TMP + 1
    stats_finish(a, ST, vMean, vRstd, TMP + 2)
    TK = ST + 4
    split_hilo(a, vMean, TK, TMP + 2, "tok")
    for f in range(6):
        s = FR + 4 * f
        a.e(f"v_mov_b32 v{s}, v{CS+f}\nv_and_b32 v{s+1}, 0xffff, v{CS+f}\nv_mov_b32 v{s+2}, 0\nv_mov_b32 v{s+3}, 0")
    a.e(f"v_mul_f32 v{TMP+4}, v{vRstd}, v{vRstd}\nv_mov_b32 v{TMP+5}, v{TMP+4}".replace(f"v_mov_b32 v{TMP+5}, v{TMP+4}", f"v_mul_f32 v{TMP+5}, v{vRstd}, v{vRstd}"))
    for f in range(6):
        a.e(mfma(ACC + 16 * f, FR + 4 * f, TK))
    a.e(f"""
    s_mul_i32 s28, s19, {86*1024}
    s_mul_i32 s29, s20, 6144
    s_add_u32 s28, s28, s29
    s_add_u32 s28, s28, {HF}
    s_nop 7
    """)
    PK = TOK
    for sub in range(3):
        if sub == 1:
            a.e(f"s_cmp_eq_u32 s20, 14\ns_cbranch_scc1 {L_end}")
        G = ACC + 32 * sub; U = G + 16
        if sub == 2:
            a.e("s_nop 3")
        for r in range(8):
            a.e(f"v_pk_mul_f32 v[{G+2*r}:{G+2*r+1}], v[{G+2*r}:{G+2*r+1}], v[{TMP+4}:{TMP+5}]")
        for r in range(8):
            a.e(f"v_pk_mul_f32 v[{G+2*r}:{G+2*r+1}], v[{G+2*r}:{G+2*r+1}], v[{U+2*r}:{U+2*r+1}]")
        p = PK + 8 * sub
        for r in range(8):
            a.e(f"v_cvt_pk_bf16_f32 v{p+r}, v{G+2*r}, v{G+2*r+1}")
        a.vmem(f"buffer_store_dwordx4 {R(p)}, v{vL16}, s[12:15], s28 offen")
        a.vmem(f"buffer_store_dwordx4 {R(p+4)}, v{vL16}, s[12:15], s28 offen offset:1024")
        a.e("s_add_u32 s28, s28, 2048")
    a.e(f"{L_end}:\ns_endpgm")
    return kd(name, 256), NSC * 24576

def build(extra_launches=0):
    a = Asm()
    kds = []
    kds.append(gen_prep(a))
    kds.append(gen_qkv(a))
    kds.append(gen_attn(a))
    k, lds_wo = gen_proj(a, "wo_kernel", A_WO, 512 * 1024, 32, OF, 32768, XA, XB, STB, False); kds.append(k)
    k, lds_gu = gen_gu(a); kds.append(k)
    k, lds_dn = gen_proj(a, "down_kernel", A_WD, 1376 * 1024, 86, HF, 86 * 1024, XB, XA, STA, False); kds.append(k)
    k, _ = gen_proj(a, "downf_kernel", A_WD, 1376 * 1024, 86, HF, 86 * 1024, XB, None, None, True); kds.append(k)
    L = []
    def launch(k, blk, lds):
        L.append(f"; @launch kernel={k} grid=(256,1,1) block=({blk},1,1) lds={lds}")
    launch("prep_kernel", 256, 32768)
    for layer in range(2):
        launch("qkv_kernel", 256, 98304)
        launch("attn_kernel", 512, 131072 + 4096)
        launch("wo_kernel", 256, lds_wo)
        launch("gu_kernel", 256, lds_gu)
        launch("down_kernel" if layer == 0 else "downf_kernel", 256, lds_dn)
    hdr = "\n".join(L) + "\n" + '.amdgcn_target "amdgcn-amd-amdhsa--gfx950"\n.text\n'
    return hdr + a.text() + '.section .rodata,"a"\n' + "".join(kds)

if __name__ == "__main__":
    out = sys.argv[1] if len(sys.argv) > 1 else f"cdna_kernels/{NAME}.s"
    open(out, "w").write(build())
```

```python
import sys, struct

NAME = "interleave_layers__mha_block__glu_gated_bilinear__prompt"
MB = 1 << 20
KB = 1024
XA = 0
XB = 2 * MB
OF = 4 * MB
QF = 6 * MB
KV = 8 * MB
HF = 12 * MB
STA = 18 * MB
STB = 18 * MB + 256 * KB
LAY = 20 * MB
WPQ = 56 * MB
WPQ_G = 1536 * KB
WPO = 46 * MB
WPG = 47 * MB
WPD = 50 * MB
CSPQ = 44 * MB
CSPQ_G = 24 * KB
CSPG = 44 * MB + 256 * KB
CSPU = CSPG + 24 * KB
FLG = 52 * MB + 64 * KB
GF = FLG
QFL = FLG + 8192
BGF = FLG + 8192 + 4096
FLG_BYTES = 8192
DBG = 53 * MB
QF0 = 68 * MB
QF1 = 74 * MB
WS_USED = 80 * MB
A_X, A_WQKV, A_WO, A_BX, A_WG, A_WU, A_WD, A_OUT, A_DBG, A_WS = [8 * i for i in range(10)]

OPT = dict(gpg='2', gpt='4', gfg='2', gD='6', gTL='8', qpg='4', qD='4', tlb=False, wsoff='0', wb='1', gshort=False, gq2='2', gd2='2', bg30=False, lf=True, codepf2=True, pw='7', gidle=True, gq='3', gd='6', pfn='3', l0o='a', cswarm=False, gp='c', pf0=True, pf1=True, pwph='7', wtok0='12', codepf=True, qb='9', bgph='46', bgt='23', aprio='no', guv='B', qv='A', hstamps=False, q0up='2', q0la='7', qstamp=False, hstamp=False, bgnt=False, astamp=False, force_mode=0, lprio=True, x_nod89=False, x_nobs=False, dstamp=False, ptok0="12", pnt="20", qtok0="10", pD="6", pfplan="g", stamp=False, force_slow=False, vmask=True, ones_all=False, pfa="128", pfa_t="21", pfq=True, pfd=True, kvnt=False)

def f32(x):
    return hex(struct.unpack("<I", struct.pack("<f", x))[0])

class Asm:
    def __init__(self):
        self.lines = []
        self.vm = 0
        self.uid = 0
        self.nbar = 0
        self.nstamp = 0
        self.stamp_names = []
        self.cold = []
    def e(self, s):
        for l in s.strip("\n").split("\n"):
            l = l.strip()
            if not l:
                continue
            self.lines.append(("" if l.endswith(":") else "    ") + l)
    def vmem(self, s):
        self.e(s)
        self.vm += 1
        return self.vm - 1
    def wait_vm(self, idx):
        n = self.vm - idx - 1
        assert n >= 0
        self.e(f"s_waitcnt vmcnt({min(n, 63)})")
    def bar(self):
        self.e("s_barrier")
        self.nbar += 1
    def label(self, base):
        self.uid += 1
        return f"L_{base}_{self.uid}"
    def stamp(self, idx):
        if OPT["stamp"]:
            self.e(f"s_memtime s[90:91]\ns_waitcnt lgkmcnt(0)\ns_lshl_b32 s92, s24, 5\ns_add_u32 m0, s92, {idx}\ns_nop 3\nv_writelane_b32 v255, s90, m0")
    def capture(self, fn):
        save, vm, nb = self.lines, self.vm, self.nbar
        self.lines = []
        fn()
        out = [l.strip() for l in self.lines]
        self.lines, self.vm, self.nbar = save, vm, nb
        return out
    def group(self, fn):
        n0 = len(self.lines)
        fn()
        g = "\n".join(l.strip() for l in self.lines[n0:])
        del self.lines[n0:]
        self.lines.append("@G" + g)
    def rstamp(self, idx):
        if OPT["stamp"]:
            self.e(f"s_memrealtime s[90:91]\ns_waitcnt lgkmcnt(0)\ns_lshl_b32 s92, s24, 5\ns_add_u32 m0, s92, {idx}\ns_nop 3\nv_writelane_b32 v255, s90, m0")
    def text(self):
        return "\n".join(self.lines) + "\n"

def srd(a, d, ptr, size):
    a.e(f"s_mov_b32 s{d}, s{ptr}\ns_mov_b32 s{d+1}, s{ptr+1}\ns_mov_b32 s{d+2}, {hex(size)}\ns_mov_b32 s{d+3}, 0x00020000")

def kernel_begin(a, name):
    a.e(f".globl {name}\n.p2align 8\n.type {name},@function\n{name}:")
    a.vm = 0

def kd(name, vgpr, sgpr=96):
    acc = (vgpr + 3) // 4 * 4
    return f""".p2align 6
.amdhsa_kernel {name}
  .amdhsa_next_free_vgpr {vgpr}
  .amdhsa_next_free_sgpr {sgpr}
  .amdhsa_accum_offset {acc}
  .amdhsa_group_segment_fixed_size 0
  .amdhsa_kernarg_size 80
  .amdhsa_user_sgpr_count 2
  .amdhsa_user_sgpr_kernarg_segment_ptr 1
  .amdhsa_system_sgpr_workgroup_id_x 1
.end_amdhsa_kernel
"""

def R(b, n=4):
    return f"v[{b}:{b+n-1}]"

def mfma(d, A, B, C=None):
    c = R(d, 16) if C is None else C
    return f"v_mfma_f32_32x32x16_bf16 {R(d,16)}, {R(A)}, {R(B)}, {c}"

def tr_addr(a, vdst, vL, tmp, rs=6):
    a.e(f"""
    v_lshrrev_b32 v{tmp}, 5, v{vL}
    v_lshlrev_b32 v{vdst}, {rs+2}, v{tmp}
    v_bfe_u32 v{tmp}, v{vL}, 2, 2
    v_lshl_add_u32 v{vdst}, v{tmp}, {rs}, v{vdst}
    v_bfe_u32 v{tmp}, v{vL}, 4, 1
    v_lshl_add_u32 v{vdst}, v{tmp}, 5, v{vdst}
    v_and_b32 v{tmp}, 3, v{vL}
    v_lshl_add_u32 v{vdst}, v{tmp}, 3, v{vdst}
    """)

def stats_compute(a, P, nP, tmp, vS, vQ):
    a.e(f"v_mov_b32 v{vS}, 0\nv_mov_b32 v{vQ}, 0")
    for i in range(nP):
        a.e(f"""
        v_lshlrev_b32 v{tmp}, 16, v{P+i}
        v_and_b32 v{tmp+1}, 0xffff0000, v{P+i}
        v_add_f32 v{vS}, v{vS}, v{tmp}
        v_fmac_f32 v{vQ}, v{tmp}, v{tmp}
        v_add_f32 v{vS}, v{vS}, v{tmp+1}
        v_fmac_f32 v{vQ}, v{tmp+1}, v{tmp+1}
        """)
    a.e(f"""
    s_nop 1
    v_permlane32_swap_b32 v{vS}, v{vQ}
    s_nop 1
    v_add_f32 v{vS}, v{vS}, v{vQ}
    """)

def stats_f32(a, X, vS, vQ):
    a.e(f"v_pk_add_f32 v[{vS}:{vS+1}], v[{X}:{X+1}], v[{X+2}:{X+3}]")
    a.e(f"v_pk_mul_f32 v[{vQ}:{vQ+1}], v[{X}:{X+1}], v[{X}:{X+1}]")
    for r in range(1, 8):
        if r >= 2:
            a.e(f"v_pk_add_f32 v[{vS}:{vS+1}], v[{vS}:{vS+1}], v[{X+2*r}:{X+2*r+1}]")
        a.e(f"v_pk_fma_f32 v[{vQ}:{vQ+1}], v[{X+2*r}:{X+2*r+1}], v[{X+2*r}:{X+2*r+1}], v[{vQ}:{vQ+1}]")
    a.e(f"""
    v_add_f32 v{vS}, v{vS}, v{vS+1}
    v_add_f32 v{vQ}, v{vQ}, v{vQ+1}
    s_nop 1
    v_permlane32_swap_b32 v{vS}, v{vQ}
    s_nop 1
    v_add_f32 v{vS}, v{vS}, v{vQ}
    """)

def stats_finish(a, ST, vMean, vRstd, tmp, adds=True):
    for w in ((8, 4, 2, 1) if adds else ()):
        for i in range(w):
            a.e(f"v_add_f32 v{ST+i}, v{ST+i}, v{ST+i+w}")
    a.e(f"""
    v_mov_b32 v{tmp}, v{ST}
    s_nop 1
    v_permlane32_swap_b32 v{ST}, v{tmp}
    s_nop 1
    v_mul_f32 v{vMean}, {f32(-1.0/512)}, v{ST}
    v_mul_f32 v{tmp}, {f32(1.0/512)}, v{tmp}
    v_fma_f32 v{tmp}, -v{vMean}, v{vMean}, v{tmp}
    v_max_f32 v{tmp}, 0, v{tmp}
    v_add_f32 v{tmp}, {f32(1e-5)}, v{tmp}
    v_rsq_f32 v{vRstd}, v{tmp}
    s_nop 0
    """)

def split_hilo(a, vsrc, vdst, tmp, mode):
    a.e(f"""
    v_cvt_pk_bf16_f32 v{vdst}, v{vsrc}, v{vsrc}
    v_and_b32 v{tmp}, 0xffff0000, v{vdst}
    v_sub_f32 v{tmp}, v{vsrc}, v{tmp}
    """)
    if mode == "tok":
        a.e(f"v_mov_b32 v{vdst+1}, v{vdst}\nv_cvt_pk_bf16_f32 v{vdst+2}, v{tmp}, v{tmp}\nv_mov_b32 v{vdst+3}, 0")
    elif mode == "hl":
        a.e(f"v_cvt_pk_bf16_f32 v{vdst}, v{vsrc}, v{tmp}\nv_mov_b32 v{vdst+1}, 0\nv_mov_b32 v{vdst+2}, 0\nv_mov_b32 v{vdst+3}, 0")
    else:
        a.e(f"v_cvt_pk_bf16_f32 v{vdst}, v{vsrc}, v{tmp}")

sW, sG, sJ, sREDO, sQV, sMODE, sLAY, sL = 16, 18, 19, 20, 21, 22, 23, 24
sFB = 25
sWQ, sWO, sWG, sWD = 26, 27, 28, 29
sLW = 30
sGFL = 31
sW10 = 17
sLB, sXN, sSN, sQB = 3, 79, 88, 77
sMYF = 21
vCN = 0
vL32, vWF = 254, 253
RS = 236
PR = 244
vL, vL16, vW1, vW2, vL4, vZ = 1, 3, 4, 5, 6, 7
XCH = 140 * KB
LDS_BYTES = 160 * KB

class Chunk:
    def __init__(self, sbase, goff, nblk, lds):
        self.sbase, self.goff, self.nblk, self.lds = sbase, goff, nblk, lds
        self.last = None

def dma_chunk(a, ch, nw=4):
    nb = ch.nblk // nw
    assert nb * nw == ch.nblk
    sw = sLW if nw == 4 else sW10
    a.e(f"s_mul_i32 s64, s{sw}, {nb}\ns_add_u32 s65, s64, s{ch.sbase}")
    for b0 in range(0, nb, 4):
        a.e(f"s_add_u32 m0, s64, {ch.lds*KB + b0*KB}\ns_add_u32 s66, s65, {ch.goff + b0*KB}")
        for b in range(b0, min(nb, b0 + 4)):
            ch.last = a.vmem(f"buffer_load_dwordx4 v{vL16}, s[8:11], s66 offen offset:{(b-b0)*KB} lds")

def l2_prefetch(a, vdst, vaddr, soff):
    return a.vmem(f"buffer_load_dword v{vdst}, v{vaddr}, s[8:11], s{soff} offen")

def lds_win(off, bases=(vL16, vW1, vW2)):
    return bases[off >> 16], off & 0xffff

class FragPipe:
    def __init__(self, a, base, D, frags):
        self.a, self.base, self.D, self.frags = a, base, D, frags
        self.issued = 0
        self.ops = 0
        self.cum = []
        self.slots = []
    def slot(self, g):
        return self.slots[g]
    def issue(self):
        g = self.issued
        if g >= len(self.frags):
            return
        va, off = self.frags[g]
        if va == "reg":
            self.slots.append(off)
        else:
            self.slots.append(self.base + 4 * (g % self.D))
            self.a.e(f"ds_read_b128 {R(self.slots[g])}, v{va} offset:{off}")
            self.ops += 1
        self.cum.append(self.ops)
        self.issued += 1
    def wait(self, g):
        if self.frags[g][0] == "reg" and (g == 0 or self.frags[g - 1][0] == "reg"):
            return
        self.a.e(f"s_waitcnt lgkmcnt({self.ops - self.cum[g]})")

def stores(a, lst):
    L1 = a.label("sts"); L2 = a.label("std")
    a.e(f"s_cmp_lg_u32 s{sMODE}, 0\ns_cbranch_scc1 {L1}")
    for s in lst:
        a.vmem(s)
    a.e(f"{L2}:")
    a.cold.append(f"{L1}:\n" + "\n".join(s + " sc1" for s in lst) + f"\ns_branch {L2}")

def poll(a, soff, mask_lo, starget, wide=True):
    Lp = a.label("poll"); Ld = a.label("polld")
    def ld(r):
        if wide == 8:
            q = PR if r == PR else 224
            return f"buffer_load_dwordx4 {R(q)}, v{vL32}, s[8:11], s{soff} offen sc1\nbuffer_load_dwordx4 {R(q+4)}, v{vL32}, s[8:11], s{soff} offen offset:16 sc1"
        if wide:
            return f"buffer_load_dwordx4 {R(r)}, v{vL32}, s[8:11], s{soff} offen sc1"
        return f"buffer_load_dword v{r}, v{vL4}, s[8:11], s{soff} offen sc1"
    def chk(r):
        if wide == 8:
            q = PR if r == PR else 224
            return f"v_min3_u32 v{q}, v{q}, v{q+1}, v{q+2}\nv_min3_u32 v{q+3}, v{q+3}, v{q+4}, v{q+5}\nv_min3_u32 v{q}, v{q}, v{q+6}, v{q+7}\nv_min_u32 v{q}, v{q}, v{q+3}\nv_cmp_gt_u32 vcc, s{starget}, v{q}"
        pre = f"v_min3_u32 v{r}, v{r}, v{r+1}, v{r+2}\nv_min_u32 v{r}, v{r}, v{r+3}\n" if wide else ""
        return pre + f"v_cmp_gt_u32 vcc, s{starget}, v{r}"
    a.e(f"""
    s_mov_b32 exec_lo, {mask_lo}
    s_mov_b32 exec_hi, 0
    s_mov_b32 s60, 0
    {ld(PR)}
{Lp}:
    {ld(PR+4)}
    s_waitcnt vmcnt({2 if wide == 8 else 1})
    {chk(PR)}
    s_add_u32 s60, s60, 1
    s_cmp_gt_u32 s60, 0x4000
    s_cbranch_vccz {Ld}
    {ld(PR)}
    s_waitcnt vmcnt({2 if wide == 8 else 1})
    {chk(PR+4)}
    s_cbranch_scc1 {Ld}
    s_nop 0
    s_cbranch_vccnz {Lp}
{Ld}:
    s_mov_b64 exec, -1
    """)

def signal_wave(a, val_off, stamp=None):
    a.e(f"s_add_u32 s61, s{sFB}, {val_off}\nv_mov_b32 v2, s61\ns_mov_b64 exec, 1\ns_waitcnt vmcnt(0)")
    if stamp is not None: a.stamp(stamp)
    vm = a.vm
    stores(a, [f"buffer_store_dword v2, v{vWF}, s[8:11], s{sMYF} offen"])
    a.vm = vm
    a.e("s_mov_b64 exec, -1")

def signal_group(a, val_off):
    a.e(f"s_add_u32 s61, s{sFB}, {val_off}\ns_mov_b64 exec, 15\nv_mov_b32 v2, s61")
    stores(a, [f"buffer_store_dword v2, v{vL4}, s[8:11], s{sMYF} offen"])
    a.e("s_mov_b64 exec, -1")

CNT = LDS_BYTES - 16
sCNT = 78
def arrive(a, n, sig, second=False):
    L = a.label("arr")
    a.e(f"""
    v_mov_b32 v2, 1
    s_mov_b64 exec, 1
    ds_add_rtn_u32 v2, v{vCN}, v2{' offset:4' if second else ''}
    {f's_mov_b32 s61, {n-1}' if second else f's_add_u32 s{sCNT}, s{sCNT}, {n}'}
    {'' if second else f's_sub_u32 s61, s{sCNT}, 1'}
    s_waitcnt lgkmcnt(0)
    v_readfirstlane_b32 s62, v2
    s_mov_b64 exec, -1
    s_cmp_lg_u32 s61, s62
    s_cbranch_scc1 {L}
    """)
    vm = a.vm
    sig()
    a.vm = vm
    a.e(f"{L}:")

def by_role_lf(a, comp, load):
    Lc = a.label("cp"); Le = a.label("se")
    a.e(f"s_cmp_lt_u32 s{sW}, 4\ns_cbranch_scc1 {Lc}")
    n0 = a.nbar
    load()
    nl = a.nbar - n0
    vm = a.vm
    a.e(f"s_branch {Le}\n{Lc}:")
    a.nbar = n0
    a.vm = 0
    comp()
    assert a.nbar - n0 == nl
    a.vm = vm
    a.e(f"{Le}:")

def by_role(a, comp, load):
    Ll = a.label("ld"); Le = a.label("se")
    a.e(f"s_cmp_ge_u32 s{sW}, 4\ns_cbranch_scc1 {Ll}")
    n0 = a.nbar
    vm_save = a.vm
    a.vm = 0
    comp()
    nc = a.nbar - n0
    a.e(f"s_branch {Le}\n{Ll}:")
    a.nbar = n0
    a.vm = vm_save
    load()
    assert a.nbar - n0 == nc, (a.nbar - n0, nc)
    a.e(f"{Le}:")

def only_wave0(a, fn, w=0):
    L = a.label("w0")
    a.e(f"s_cmp_lg_u32 s{sW}, {w}\ns_cbranch_scc1 {L}")
    vm = a.vm
    fn()
    a.vm = vm
    a.e(f"{L}:")

def loader_stage(a, need, issue, extra=None, cond_first=False, prio=0):
    def emit(with_cond):
        a.e(f"s_setprio {prio}")
        for k in range(len(need)):
            if extra and k in extra and with_cond:
                extra[k]()
            if need[k]:
                a.wait_vm(max(c.last for c in (need[k] if isinstance(need[k], list) else [need[k]])))
            a.bar()
            for ch in issue.get(k, []):
                if isinstance(ch, tuple):
                    if with_cond:
                        ch[0]() if callable(ch[0]) else dma_chunk(a, ch[0])
                elif callable(ch):
                    ch()
                else:
                    dma_chunk(a, ch)
    if any(isinstance(ch, tuple) for l in issue.values() for ch in l):
        L1 = a.label("ldl"); L2 = a.label("lde")
        vm, nb = a.vm, a.nbar
        a.e(f"s_cmp_lg_u32 s{sL}, 0\ns_cbranch_scc1 {L1}")
        emit(True)
        a.e(f"s_branch {L2}\n{L1}:")
        a.vm, a.nbar = vm, nb
        if cond_first:
            a.vm = 0
            for l in need:
                for ch in (l or []):
                    a.vm += ch.nblk // 4
                    ch.last = a.vm - 1
        emit(False)
        a.e(f"{L2}:")
    else:
        emit(True)

class TokPipe:
    def __init__(self, a, base, NT, n, soff):
        self.a, self.base, self.NT, self.n, self.soff = a, base, NT, n, soff
        self.issued = 0
        self.idx = []
    def slot(self, k):
        return self.base + 4 * (k % self.NT)
    def issue(self):
        k = self.issued
        if k >= self.n:
            return
        self.idx.append(self.a.vmem(f"buffer_load_dwordx4 {R(self.slot(k))}, v{vL16}, s[8:11], s{self.soff} offen offset:{1024*(k%4)} sc1"))
        if k % 4 == 3:
            self.a.e(f"s_add_u32 s{self.soff}, s{self.soff}, 4096")
        self.issued += 1
    def wait(self, k):
        self.a.wait_vm(self.idx[k])

def gemm_loop(a, fp, tp, sched, bars, emit_mfma, tok0=6, aux=None, tok_at=None, fills=None, per_gap=3, stamps=None, aux_late=False, fgrp=2, tgrp=2, aux_at=None):
    def ensure(g):
        if g in bars:
            a.bar()
    for _ in range(tok0):
        tp.issue()
    aux = list(aux or [])
    if not aux_late:
        while aux:
            aux.pop(0)()
    for g in range(fp.D):
        ensure(fp.issued); fp.issue()
    q = []
    waited = -1
    fwaited = -1
    for g, (ks, f) in enumerate(sched):
        if ks > waited:
            waited = min(ks + tgrp - 1, tp.issued - 1)
            tp.wait(waited)
        if stamps and g in stamps: a.stamp(stamps[g])
        if fills and g in fills:
            q += fills[g]()
        if g > fwaited:
            fwaited = min(g + fgrp - 1, fp.issued - 1)
            fp.wait(fwaited)
        emit_mfma(ks, f, fp.slot(g), tp.slot(ks))
        ensure(fp.issued); fp.issue()
        if aux_at and g in aux_at and aux:
            aux.pop(0)()
        elif g in tok_at and tp.issued < min(tp.n, ks + tp.NT - 1):
            tp.issue()
        elif g in tok_at and aux and not aux_at:
            aux.pop(0)()
        else:
            n = 0
            while q and n < (per_gap if isinstance(per_gap, int) else per_gap[0] if g < per_gap[1] else per_gap[2]):
                ins = q.pop(0)
                if ins.startswith("@G"):
                    a.e(ins[2:])
                    a.vm += sum(1 for l in ins[2:].split("\n") if l.startswith("buffer_"))
                    n += 1
                elif ins == "s_barrier":
                    a.bar()
                elif ins.startswith("buffer_"):
                    a.vmem(ins)
                else:
                    a.e(ins)
                if ins.startswith("v_mfma"):
                    break
                n += 1
    assert not aux and not q, (len(aux), len(q))

def csp_addr(a, v, tmp):
    a.e(f"v_and_b32 v{v}, 31, v{vL}\nv_lshlrev_b32 v{v}, 4, v{v}\nv_lshrrev_b32 v{tmp}, 5, v{vL}\nv_lshl_add_u32 v{v}, v{tmp}, 3, v{v}\ns_mov_b32 s59, 0x05040100")


def reduce_cs(a, vaddr, T, sdst, st_fn):
    for w in range(8):
        a.e(f"ds_read_b32 v{T+w}, v{vaddr} offset:{256*w}")
    a.e(f"v_and_b32 v2, 31, v{vL}\nv_lshlrev_b32 v2, 4, v2\ns_waitcnt lgkmcnt(0)")
    for w in (4, 2, 1):
        for i in range(w):
            a.e(f"v_add_f32 v{T+i}, v{T+i}, v{T+i+w}")
    split_hilo(a, T, T + 8, T + 9, "one")
    a.e("s_mov_b32 exec_lo, -1\ns_mov_b32 exec_hi, 0")
    st_fn(f"buffer_store_dword v{T+8}, v2, s[8:11], s{sdst} offen")
    a.e("s_mov_b64 exec, -1")

def wait_l(a, n0, n1):
    L = a.label("wl")
    a.e(f"s_waitcnt vmcnt({n0})\ns_cmp_eq_u32 s{sL}, 0\ns_cbranch_scc1 {L}\ns_waitcnt vmcnt({n1})\n{L}:")

def layer0(a, fn):
    L = a.label("l0")
    a.e(f"s_cmp_lg_u32 s{sL}, 0\ns_cbranch_scc1 {L}")
    vm = a.vm
    fn()
    a.vm = vm
    a.e(f"{L}:")

vBG, vBT, vBS, BF, BO, BD = 188, 189, 190, 192, 208, 212
BGB = 96 * KB
def bg_issue(a, sVW, dma):
    n0 = len(a.lines)
    a.e(f"""
    s_load_dwordx2 s[4:5], s[0:1], {A_WO}
    s_load_dwordx4 s[80:83], s[0:1], {A_WG}
    s_load_dwordx2 s[6:7], s[0:1], {A_WD}
    s_waitcnt lgkmcnt(0)
    """)
    L_o = a.label("bo"); L_d = a.label("bd"); L_go = a.label("bgo"); L_od = a.label("bod")
    def wo_dst(ks, ct, dst, t):
        return f"""
        s_lshl_b32 s{dst}, s{ct}, 16
        s_and_b32 s{t}, s{ks}, 15
        s_lshl_b32 s{t}, s{t}, 12
        s_add_u32 s{dst}, s{dst}, s{t}
        s_lshr_b32 s{t}, s{ks}, 4
        s_lshl_b32 s{t}, s{t}, 11
        s_add_u32 s{dst}, s{dst}, s{t}
        s_add_u32 s{dst}, s{dst}, {WPO}
        """
    def wd_dst(ks, ct, dst, t):
        return f"""
        s_mul_i32 s{dst}, s{ct}, {172*KB}
        s_cmp_ge_u32 s{ks}, 43
        s_cselect_b32 s{t}, {2048 - 43*4096 + (1 << 32)}, 0
        s_add_u32 s{dst}, s{dst}, s{t}
        s_lshl_b32 s{t}, s{ks}, 12
        s_add_u32 s{dst}, s{dst}, s{t}
        s_add_u32 s{dst}, s{dst}, {WPD}
        """
    def gu_dst(v, dst, t):
        return f"""
        s_mul_i32 s{t}, s{v}, 43
        s_lshr_b32 s{t}, s{t}, 7
        s_mul_i32 s{dst}, s{t}, {192*KB - 3*2048}
        s_lshl_b32 s{t}, s{v}, 11
        s_add_u32 s{dst}, s{dst}, s{t}
        s_add_u32 s{dst}, s{dst}, s66
        """
    a.e(f"""
    s_mov_b32 s75, 0x00020000
    s_cmp_lt_u32 s2, 176
    s_cbranch_scc0 {L_o}
    s_cmp_ge_u32 s2, 88
    s_cselect_b32 s72, s82, s80
    s_cselect_b32 s73, s83, s81
    s_cselect_b32 s60, 88, 0
    s_cselect_b32 s66, 1024, 0
    s_cselect_b32 s98, {CSPU - CSPG}, 0
    s_mov_b32 s74, {512*2752}
    s_sub_u32 s60, s2, s60
    s_lshr_b32 s61, s60, 2           ; pair
    s_and_b32 s62, s60, 3            ; quarter
    s_lshl_b32 s63, s62, 3
    s_add_u32 s63, s63, s{sVW}        ; ks
    s_mul_i32 s64, s63, {16*2752}
    s_lshl_b32 s65, s61, 7
    s_add_u32 s64, s64, s65          ; src0
    s_mul_i32 s65, s63, {6*KB}
    s_add_u32 s66, s66, s65
    s_add_u32 s66, s66, {WPG}
    s_lshl_b32 s67, s61, 1           ; v0
    {gu_dst(67, 93, 68)}
    s_add_u32 s67, s67, 1
    {gu_dst(67, 94, 68)}
    s_lshl_b32 s68, s61, 10
    s_add_u32 s98, s98, s68
    s_lshl_b32 s68, s62, 2
    s_add_u32 s98, s98, s68
    s_add_u32 s98, s98, {CSPG}
    s_mov_b32 s95, s93
    s_mov_b32 s96, s94
    s_mov_b32 s97, 2
    s_mov_b32 s69, 2752
    s_branch {L_go}
{L_o}:
    s_sub_u32 s60, s2, 176
    s_lshl_b32 s60, s60, 4
    s_lshl_b32 s61, s{sVW}, 1
    s_add_u32 s60, s60, s61
    s_min_u32 s60, s60, 942
    s_mov_b32 s97, 4
    s_mov_b32 s69, 1024
    s_cmp_lt_u32 s60, 256
    s_cbranch_scc0 {L_d}
    s_mov_b32 s72, s4
    s_mov_b32 s73, s5
    s_mov_b32 s74, {512*1024}
    s_lshr_b32 s61, s60, 5           ; ct
    s_and_b32 s62, s60, 31           ; ks
    s_add_u32 s63, s62, 1
    {wo_dst(62, 61, 93, 68)}
    {wo_dst(63, 61, 95, 68)}
    s_branch {L_od}
{L_d}:
    s_mov_b32 s72, s6
    s_mov_b32 s73, s7
    s_mov_b32 s74, {1376*1024}
    s_sub_u32 s60, s60, 256
    s_mul_i32 s61, s60, 763
    s_lshr_b32 s61, s61, 16          ; ct
    s_mul_i32 s62, s61, 86
    s_sub_u32 s62, s60, s62          ; ks
    s_add_u32 s63, s62, 1
    {wd_dst(62, 61, 93, 68)}
    {wd_dst(63, 61, 95, 68)}
{L_od}:
    s_lshl_b32 s64, s62, 14
    s_lshl_b32 s65, s61, 7
    s_add_u32 s64, s64, s65
    s_add_u32 s94, s93, 1024
    s_add_u32 s96, s95, 1024
{L_go}:
    v_lshrrev_b32 v2, 3, v{vL}
    v_mul_lo_u32 v{vBG}, v2, s69
    v_and_b32 v2, 7, v{vL}
    v_lshl_add_u32 v{vBG}, v2, 4, v{vBG}
    s_lshl_b32 s99, s69, 3           ; 8 rows
    """)
    a.e("s_mov_b32 s89, s64")
    a.e(f"s_lshl_b32 s65, s{sVW}, 12\ns_add_u32 s65, s65, {BGB}")
    tr_addr(a, vBT, vL, 2, 7)
    a.e(f"v_add_u32 v{vBT}, s65, v{vBT}")
    L_q = a.label("bq"); L_e = a.label("be")
    a.e(f"""
    s_mov_b32 m0, s65
    s_add_u32 s66, s89, s99
    buffer_load_dwordx4 v{vBG}, s[72:75], s89 offen lds
    s_add_u32 m0, s65, {KB}
    s_add_u32 s64, s66, s99
    buffer_load_dwordx4 v{vBG}, s[72:75], s66 offen lds
    s_cmp_lt_u32 s2, 96
    s_cbranch_scc1 {L_q}
    s_cmp_eq_u32 s97, 2
    s_cselect_b32 s64, s89, s64
    s_add_u32 m0, s65, {2*KB}
    s_add_u32 s66, s64, s99
    buffer_load_dwordx4 v{vBG}, s[72:75], s64 offen lds
    s_add_u32 m0, s65, {3*KB}
    s_nop 0
    buffer_load_dwordx4 v{vBG}, s[72:75], s66 offen lds
    s_branch {L_e}
{L_q}:
    s_load_dwordx2 s[72:73], s[0:1], {A_WQKV}
    s_mov_b32 s74, {512*3072}
    s_lshr_b32 s61, s2, 2
    s_and_b32 s62, s2, 3
    s_lshl_b32 s62, s62, 3
    s_add_u32 s62, s62, s{sVW}
    s_mul_i32 s63, s62, {16*3072}
    s_lshl_b32 s64, s61, 7
    s_add_u32 s63, s63, s64
    s_add_u32 s64, s63, {8*3072}
    s_and_b32 s66, s61, 7
    s_mul_i32 s95, s66, {192*KB}
    s_mul_i32 s66, s62, 3
    s_lshr_b32 s67, s61, 3
    s_add_u32 s66, s66, s67
    s_lshl_b32 s66, s66, 10
    s_add_u32 s95, s95, s66
    s_add_u32 s95, s95, {WPQ}
    s_add_u32 s96, s95, {96*KB}
    v_lshrrev_b32 v2, 3, v{vL}
    v_mul_u32_u24 v{vBG}, 3072, v2
    v_and_b32 v2, 7, v{vL}
    v_lshl_add_u32 v{vBG}, v2, 4, v{vBG}
    s_add_u32 m0, s65, {2*KB}
    s_waitcnt lgkmcnt(0)
    buffer_load_dwordx4 v{vBG}, s[72:75], s63 offen lds
    s_add_u32 m0, s65, {3*KB}
    s_nop 0
    buffer_load_dwordx4 v{vBG}, s[72:75], s64 offen lds
{L_e}:
    """)
    if not dma:
        keep = [l for l in a.lines[n0:] if " lds" not in l and "s_load" not in l and " m0," not in l]
        del a.lines[n0:]
        a.lines += keep

def bg_pack(a, sVW):
    L_b2 = a.label("b2"); L_bx = a.label("bx")
    for b in range(4):
        o = (b // 2) * 2 * KB + (b % 2) * 64
        a.e(f"ds_read_b64_tr_b16 v[{BF+4*b}:{BF+4*b+1}], v{vBT} offset:{o}\nds_read_b64_tr_b16 v[{BF+4*b+2}:{BF+4*b+3}], v{vBT} offset:{o+1024}")
    for i in range(4):
        a.e(f"v_mov_b32 v{BO+i}, 0x3f803f80")
    a.e(f"""
    s_lshl_b32 s60, s{sVW}, 8
    s_add_u32 s60, s60, {144*KB}
    v_add_u32 v{vBS}, s60, v{vL4}
    s_waitcnt lgkmcnt(0)
    buffer_store_dwordx4 {R(BF)}, v{vL16}, s[8:11], s93 offen sc1
    buffer_store_dwordx4 {R(BF+4)}, v{vL16}, s[8:11], s94 offen sc1
    buffer_store_dwordx4 {R(BF+8)}, v{vL16}, s[8:11], s95 offen sc1
    buffer_store_dwordx4 {R(BF+12)}, v{vL16}, s[8:11], s96 offen sc1
    s_cmp_lg_u32 s97, 2
    s_cbranch_scc1 {L_bx}
    """)
    a.e(mfma(BD, BO, BF, "0"))
    a.e(mfma(172, BO, BF + 4, "0"))
    a.e(f"""
    s_nop 15
    ds_write_b32 v{vBS}, v{BD}
    ds_write_b32 v{vBS}, v172 offset:2048
    s_waitcnt lgkmcnt(0)
{L_bx}:
    """)

def bg_reduce(a):
    L = a.label("br")
    a.e(f"s_cmp_lg_u32 s97, 2\ns_cbranch_scc1 {L}")
    for sub in range(2):
        a.e(f"v_add_u32 v{vBS}, {144*KB + 2048*sub}, v{vL4}\ns_add_u32 s67, s98, {512*sub}")
        reduce_cs(a, vBS, BD, 67, lambda st: a.e(st + " sc1"))
    a.e(f"s_waitcnt vmcnt(0)\n{L}:")

def bg_signal(a):
    def bgsig():
        bg_reduce(a)
        a.e(f"""
        s_lshl_b32 s61, s2, 2
        s_add_u32 s61, s61, {BGF}
        v_mov_b32 v2, 1
        s_mov_b64 exec, 1
        buffer_store_dword v2, v{vZ}, s[8:11], s61 offen sc1
        s_mov_b64 exec, -1
        """)
    arrive(a, 4, bgsig, second=True)

def qkv_sig(a):
    a.e(f"""
    s_lshl_b32 s61, s{sL}, 11
    s_lshr_b32 s62, s{sJ}, 1
    s_lshl_b32 s62, s62, 7
    s_add_u32 s61, s61, s62
    s_lshl_b32 s62, s{sG}, 1
    s_and_b32 s63, s{sJ}, 1
    s_add_u32 s62, s62, s63
    s_lshl_b32 s62, s62, 2
    s_add_u32 s61, s61, s62
    s_add_u32 s61, s61, {QFL}
    v_mov_b32 v2, 1
    s_mov_b64 exec, 1
    buffer_store_dword v2, v{vZ}, s[8:11], s61 offen sc1
    s_mov_b64 exec, -1
    """)

def stage_qkv0(a, L_roles, warm, ticket, roles):
    NS, SB = 5, 28 * KB
    ST_L, CS_L = XCH + 1024, XCH + 2048
    vXA = 8
    vTN = 20
    def common_addr(natural):
        a.e(f"""
        v_and_b32 v24, 31, v{vL}
        v_lshrrev_b32 v25, 5, v{vL}
        v_bfe_u32 v26, v{vL}, 1, 3
        v_xor_b32 v25, v25, v26
        v_lshlrev_b32 v25, 4, v25
        v_lshl_add_u32 v25, v24, 7, v25
        s_lshl_b32 s60, s{sLW}, 2
        s_add_u32 s60, s60, {12*KB}
        v_add_u32 v25, s60, v25
        """)
        for kk in range(4):
            a.e(f"v_xor_b32 v{vXA+3*kk}, {32*kk}, v25\nv_add_u32 v{vXA+3*kk+1}, 0x10000, v{vXA+3*kk}\nv_add_u32 v{vXA+3*kk+2}, 0x20000, v{vXA+3*kk}")
        tr_addr(a, vTN, vL, 2)
        if natural:
            a.e(f"v_and_b32 v2, 32, v{vL}\nv_lshl_add_u32 v{vTN}, v2, 3, v{vTN}")
        else:
            a.e(f"s_mul_i32 s60, s{sLW}, 3\nv_add_u32 v{vTN}, s60, v{vTN}")
        a.e(f"v_add_u32 v{vTN+1}, 0x10000, v{vTN}\nv_add_u32 v{vTN+2}, 0x20000, v{vTN}")
    def xrd(dst, c, kk):
        va, off = lds_win((c % NS) * SB, (vXA + 3 * kk, vXA + 3 * kk + 1, vXA + 3 * kk + 2))
        return f"ds_read_b128 {R(dst)}, v{va} offset:{off}"
    def wrd(dst, off, second):
        va, o = lds_win(off, (vTN, vTN + 1, vTN + 2))
        return f"ds_read_b64_tr_b16 v[{dst}:{dst+1}], v{va} offset:{o}\nds_read_b64_tr_b16 v[{dst+2}:{dst+3}], v{va} offset:{o+second}"
    def verdict_branch():
        Lr = a.label("valid")
        a.e(f"""
        s_cmp_lg_u32 s{sREDO}, 0
        s_cbranch_scc1 {Lr}
        s_mov_b32 s{sREDO}, 1
        v_mov_b32 v2, {XCH}
        ds_read_b64 v[28:29], v2
        s_waitcnt lgkmcnt(0)
        v_readfirstlane_b32 s60, v28
        v_readfirstlane_b32 s61, v29
        s_cmp_eq_u32 s60, 0
        s_cbranch_scc1 {Lr}
        s_waitcnt vmcnt(0)
        s_nop 15
        s_barrier
        s_mov_b32 s{sJ}, s61
        s_cmp_eq_u32 s60, 1
        s_cbranch_scc1 {L_roles}
        s_and_b32 s{sG}, s2, 7
        s_lshr_b32 s{sJ}, s2, 3
        s_mov_b32 s{sMODE}, 1
        s_branch {L_roles}
{Lr}:
        """)
    def comp():
        ACC, FR, TK, CSO, TMP, TKO, RO, ON, RB = 32, 80, 104, 116, 128, 140, 144, 148, 152
        DW, DT = 6, 3
        roles()
        a.e(f"""
        v_lshrrev_b32 v2, 3, v{vL}
        v_and_b32 v8, 7, v{vL}
        v_lshlrev_b32 v8, 4, v8
        v_lshl_add_u32 v8, v2, 10, v8
        s_lshl_b32 s62, s{sG}, 18
        s_lshl_b32 s63, s{sJ}, 13
        s_add_u32 s62, s62, s63
        s_lshl_b32 s63, s{sW}, 8
        s_add_u32 s62, s62, s63
        buffer_load_dwordx4 v[32:35], v8, s[56:59], s62 offen
        buffer_load_dwordx4 v[36:39], v8, s[56:59], s62 offen offset:128
        """)
        warm()
        Lx = a.label("xw")
        a.e(f"""
        s_lshl_b32 s60, s{sG}, 3
        s_lshr_b32 s61, s{sJ}, 2
        s_add_u32 s60, s60, s61
        s_lshl_b32 s60, s60, 12
        s_add_u32 s60, s60, s{sW10}
        s_and_b32 s61, s{sJ}, 3
        s_lshl_b32 s61, s61, 7
        s_add_u32 s60, s60, s61
        s_add_u32 s67, s60, {STA}
        v_lshrrev_b32 v9, 3, v{vL}
        v_lshlrev_b32 v9, 4, v9
        v_bfe_u32 v10, v{vL}, 2, 1
        v_lshl_add_u32 v9, v10, 2, v9
        v_and_b32 v10, 1, v{vL}
        v_lshl_add_u32 v9, v10, 9, v9
        v_cmp_eq_u32 s[68:69], 1, v10
        s_waitcnt vmcnt(1)
        s_or_b32 s60, s{sW}, s{sREDO}
        s_cmp_eq_u32 s60, 0
        s_cbranch_scc1 {Lx}
        s_waitcnt vmcnt(0)
{Lx}:
        """)
        for h in range(2):
            S_, Q_ = 40 + 2 * h, 41 + 2 * h
            a.e(f"v_mov_b32 v{S_}, 0\nv_mov_b32 v{Q_}, 0")
            for r in range(4):
                x = 32 + 4 * h + r
                a.e(f"""
                v_lshlrev_b32 v44, 16, v{x}
                v_and_b32 v45, 0xffff0000, v{x}
                v_add_f32 v{S_}, v{S_}, v44
                v_fmac_f32 v{Q_}, v44, v44
                v_add_f32 v{S_}, v{S_}, v45
                v_fmac_f32 v{Q_}, v45, v45
                """)
        a.e("s_nop 1")
        for perm in ("[1,0,3,2]", "[2,3,0,1]"):
            for r in range(40, 44):
                a.e(f"v_add_f32_dpp v{r}, v{r}, v{r} quad_perm:{perm} row_mask:0xf bank_mask:0xf")
            a.e("s_nop 0")
        a.e(f"""
        v_cndmask_b32 v40, v40, v41, s[68:69]
        v_cndmask_b32 v42, v42, v43, s[68:69]
        s_mov_b32 exec_lo, 0x33333333
        s_mov_b32 exec_hi, 0x33333333
        """)
        stores(a, [f"buffer_store_dword v40, v9, s[8:11], s67 offen", f"buffer_store_dword v42, v9, s[8:11], s67 offen offset:8"])
        a.e("s_mov_b64 exec, -1")
        if OPT["tlb"]:
            Lt = a.label("tlb")
            a.e(f"""
            s_xor_b32 s60, s{sW}, 1
            s_or_b32 s60, s60, s{sREDO}
            s_cmp_lg_u32 s60, 0
            s_cbranch_scc1 {Lt}
            v_lshlrev_b32 v9, 21, v{vL}
            buffer_load_dword v250, v9, s[8:11], 0 offen
            s_mov_b64 exec, 1
            global_load_dword v250, v{vZ}, s[40:41]
            global_load_dword v250, v{vZ}, s[44:45]
            global_load_dword v250, v{vZ}, s[46:47]
            global_load_dword v250, v{vZ}, s[48:49]
            global_load_dword v250, v{vZ}, s[50:51]
            s_mov_b64 exec, -1
{Lt}:
            """)
        common_addr(True)
        a.e(f"""
        s_lshl_b32 s4, s{sG}, 3
        s_and_b32 s5, s{sJ}, 1
        s_lshl_b32 s5, s5, 2
        s_add_u32 s4, s4, s5
        s_add_u32 s4, s4, s{sW}          ; tb
        s_lshr_b32 s5, s{sJ}, 1          ; ct
        s_lshl_b32 s32, s5, 11
        s_mul_i32 s33, s4, {86*KB}
        s_add_u32 s32, s32, s33
        s_add_u32 s32, s32, s{sQB}
        s_lshl_b32 s34, s5, 18
        s_lshl_b32 s35, s4, 11
        s_add_u32 s34, s34, s35
        s_add_u32 s34, s34, {KV}
        s_add_u32 s35, s34, 0x20000
        v_bfe_u32 v{TMP+8}, v{vL}, 4, 1
        v_lshlrev_b32 v{TMP+8}, 17, v{TMP+8}
        v_lshrrev_b32 v{TMP+6}, 5, v{vL}
        v_lshl_add_u32 v{TMP+8}, v{TMP+6}, 8, v{TMP+8}
        v_and_b32 v{TMP+6}, 15, v{vL}
        v_lshl_add_u32 v{TMP+8}, v{TMP+6}, 4, v{TMP+8}
        v_and_b32 v{TMP+9}, 31, v{vL}
        v_lshlrev_b32 v{TMP+9}, 4, v{TMP+9}
        v_lshrrev_b32 v{TMP+6}, 5, v{vL}
        v_lshl_add_u32 v{TMP+9}, v{TMP+6}, 3, v{TMP+9}
        v_add_u32 v{TMP+9}, {CS_L}, v{TMP+9}
        s_lshl_b32 s7, s4, 12
        s_add_u32 s7, s7, {STA}
        s_mov_b32 s6, 0x05040100
        """)
        for sub in range(3):
            a.e(f"v_mov_b32 v{CSO+4*sub+3}, 0")
        for i in range(4):
            a.e(f"v_mov_b32 v{ON+i}, 0x3f803f80")
        items = []
        for ks in range(32):
            items += [("t", ks, 0), ("w", ks, 1), ("w", ks, 2), ("w", ks, 0)]
        cum = []
        st = dict(i=0, ops=0, nw=0)
        slot = {}
        def issue():
            i = st["i"]
            if i >= len(items):
                return
            k, ks, f = items[i]
            if i % 16 == 0:
                if i == 48:
                    a.e("s_waitcnt vmcnt(0)")
                    ticket()
                a.bar()
                if i == 0:
                    a.stamp(1)
                elif OPT["qstamp"]:
                    a.stamp(17 + i // 16)
                if i == 80:
                    verdict_branch()
                if i == 96:
                    for q in range(4):
                        a.e(f"buffer_load_dwordx4 {R(RB+4*q)}, v{vL16}, s[8:11], s7 offen offset:{1024*q} sc1")
            if k == "t":
                slot[i] = TK + 4 * (ks % DT)
                a.e(xrd(slot[i], ks // 4, ks % 4)); st["ops"] += 1
            else:
                slot[i] = FR + 4 * (st["nw"] % DW); st["nw"] += 1
                a.e(wrd(slot[i], ((ks // 4) % NS) * SB + ((ks % 4) * 3 + f) * KB, 256)); st["ops"] += 2
            cum.append(st["ops"]); st["i"] += 1
        LA = int(OPT['q0la'])
        for _ in range(LA):
            issue()
        vMean, vRstd = TMP, TMP + 2
        def fill_fn():
            a.e("s_waitcnt vmcnt(0)")
            stats_finish(a, RB, vMean, vRstd, TMP + 1)
            split_hilo(a, vMean, TKO, TMP + 1, "tok")
            a.e(f"v_cmp_gt_u32 vcc, 32, v{vL}\nv_mov_b32 v{vRstd+1}, v{vRstd}\nv_mul_f32 v{TMP+4}, {f32(0.25*1.4426950408889634)}, v{vRstd}\nv_cndmask_b32 v{TMP+6}, 0, v{vRstd}, vcc")
            split_hilo(a, TMP + 6, RO, TMP + 1, "hl")
            a.e(f"v_mov_b32 v{TMP+5}, v{TMP+4}\ns_nop 0")
            a.e(mfma(RB, RO, ON, "0"))
        fq = a.capture(fill_fn)
        for i, (k, ks, f) in enumerate(items):
            if k == "t":
                continue
            a.e(f"s_waitcnt lgkmcnt({st['ops'] - cum[i]})")
            C = "0" if ks == 0 else None
            w, t = slot[i], slot[4 * ks]
            a.e(mfma(ACC + 16 * f, w, t, C) if f < 2 else mfma(ACC + 16 * f, t, w, C))
            issue()
            if f == 2:
                issue()
            if i >= 106:
                for _ in range(4):
                    if fq: a.e(fq.pop(0))
        assert not fq
        a.stamp(2)
        a.bar()
        for sub in range(3):
            a.e(f"ds_read_b64 v[{CSO+4*sub}:{CSO+4*sub+1}], v{TMP+9} offset:{512*sub}")
        a.e("s_waitcnt lgkmcnt(0)")
        for sub in range(3):
            a.e(f"v_perm_b32 v{CSO+4*sub+2}, v{CSO+4*sub+1}, v{CSO+4*sub}, s6")
        a.e("s_nop 1")
        a.e(mfma(ACC + 16, CSO + 4, TKO))
        a.e(mfma(ACC + 32, TKO, CSO + 8))
        a.e(mfma(ACC, CSO, TKO))
        a.e("s_nop 9")
        for sub in (1, 2, 0):
            p = ACC + 16 * sub
            for r in range(8):
                sc = (TMP + 4, vRstd, RB + 2 * r)[sub]
                a.e(f"v_pk_mul_f32 v[{p+2*r}:{p+2*r+1}], v[{p+2*r}:{p+2*r+1}], v[{sc}:{sc+1}]")
            for r in range(8):
                a.e(f"v_cvt_pk_bf16_f32 v{p+r}, v{p+2*r}, v{p+2*r+1}")
            if sub == 1:
                a.e(f"buffer_store_dwordx4 {R(p)}, v{vL16}, s[8:11], s34 offen sc1\nbuffer_store_dwordx4 {R(p+4)}, v{vL16}, s[8:11], s35 offen sc1")
            elif sub == 2:
                a.e(f"buffer_store_dwordx4 {R(p)}, v{TMP+8}, s[8:11], s34 offen offset:1024 sc1\nbuffer_store_dwordx4 {R(p+4)}, v{TMP+8}, s[8:11], s34 offen offset:1536 sc1")
            else:
                a.e(f"buffer_store_dwordx4 {R(p)}, v{vL16}, s[8:11], s32 offen sc1\nbuffer_store_dwordx4 {R(p+4)}, v{vL16}, s[8:11], s32 offen offset:1024 sc1")
        signal_wave(a, 1, 3)
    def load():
        vWQ, vX0, vX1, WF, XF_, CSA, ON, vS, vQ, T = 24, 25, 26, 32, 44, 64, 60, 112, 113, 114
        a.e(f"""
        v_lshrrev_b32 v2, 2, v{vL}
        v_mul_u32_u24 v{vWQ}, 3072, v2
        v_and_b32 v2, 3, v{vL}
        v_lshl_add_u32 v{vWQ}, v2, 4, v{vWQ}
        v_and_b32 v2, 7, v{vL}
        v_lshrrev_b32 v27, 4, v{vL}
        v_xor_b32 v2, v2, v27
        v_lshlrev_b32 v2, 4, v2
        v_lshrrev_b32 v27, 3, v{vL}
        v_lshl_add_u32 v{vX0}, v27, 10, v2
        v_xor_b32 v{vX1}, 64, v{vX0}
        s_lshl_b32 s4, s{sG}, 3
        s_and_b32 s7, s{sJ}, 1
        s_lshl_b32 s5, s7, 2
        s_add_u32 s4, s4, s5
        s_lshl_b32 s4, s4, 15
        s_lshl_b32 s5, s{sLW}, 5
        s_add_u32 s4, s4, s5             ; x byte offset of token block
        s_lshr_b32 s5, s{sJ}, 1
        s_lshl_b32 s5, s5, 6
        s_mul_i32 s6, s{sLW}, 48
        s_add_u32 s5, s5, s6
        s_mul_i32 s32, s{sLW}, 3         ; lw*3K
        s_lshl_b32 s33, s{sLW}, 2        ; lw*4K
        """)
        last = {}
        def issue(c):
            B = (c % NS) * SB
            a.e(f"""
            s_add_u32 s61, s{sG}, {c}
            s_and_b32 s61, s61, 7
            s_mul_i32 s60, s61, {64*3072}
            s_add_u32 s60, s60, s5
            s_add_u32 m0, s32, {B}
            s_lshl_b32 s61, s61, 7
            s_add_u32 s61, s61, s4
            """)
            for f in (1, 2, 0):
                a.vmem(f"buffer_load_dwordx4 v{vWQ}, s[80:83], s60 offen offset:{f*KB} lds")
            a.e(f"s_add_u32 m0, s33, {B + 12*KB}")
            for i in range(4):
                a.e(f"s_add_u32 s60, s61, {i*7*KB}")
                last[c] = a.vmem(f"buffer_load_dwordx4 v{vX1 if i & 1 else vX0}, s[56:59], s60 offen offset:{i*KB} lds")
        a.vm = 0
        UP = int(OPT['q0up'])
        for c in range(UP):
            issue(c)
        roles()
        a.e(f"v_mov_b32 v28, v24\nv_mov_b32 v29, v25\nv_mov_b32 v30, v26")
        common_addr(False)
        a.e(f"v_mov_b32 v24, v28\nv_mov_b32 v25, v29\nv_mov_b32 v26, v30")
        for i in range(4):
            a.e(f"v_mov_b32 v{ON+i}, 0x3f803f80")
        def sig0():
            Ls = a.label("tk"); Lp = a.label("tkp"); Ld = a.label("tkd"); Ln = a.label("tkn")
            a.e(f"""
            s_cmp_lg_u32 s{sREDO}, 0
            s_cbranch_scc1 {Ls}
            s_mov_b32 s60, 0
            s_mov_b64 exec, 0xff
{Lp}:
            s_add_u32 s60, s60, 1
            v_bfe_u32 v121, v123, 8, 16
            s_nop 0
            v_readlane_b32 s62, v121, 0
            """)
            for i in range(1, 8):
                a.e(f"v_readlane_b32 s63, v121, {i}\ns_add_u32 s62, s62, s63")
            a.e(f"""
            s_cmp_gt_u32 s60, 0x4000
            s_cbranch_scc1 {Ld}
            s_cmp_ge_u32 s62, 256
            s_cbranch_scc1 {Ld}
            buffer_load_dwordx2 v[122:123], v120, s[84:87], 0 offen sc1
            s_waitcnt vmcnt(0)
            s_branch {Lp}
{Ld}:
            v_and_b32 v2, 0xffffff00, v123
            v_cmp_ne_u32 vcc, 0x2000, v2
            v_cmp_ne_u32 s[62:63], -1, v122
            v_cmp_ne_u32 s[64:65], v2, v123
            s_nop 2
            s_or_b64 s[62:63], s[62:63], s[64:65]
            s_cmp_lg_u64 s[62:63], 0
            s_cselect_b32 s60, 1, {OPT['force_mode']}
            s_cmp_lg_u64 vcc, 0
            s_cselect_b32 s60, 2, s60
            s_mov_b64 exec, -1
            v_mov_b32 v2, s60
            v_mov_b32 v120, {XCH}
            ds_write_b32 v120, v2
            s_waitcnt lgkmcnt(0)
            s_cmp_lg_u32 s60, 0
            s_cbranch_scc1 {Ln}
{Ls}:
            """)
            signal_group(a, 0)
            a.e(f"{Ln}:")
        for k in range(8):
            a.wait_vm(last[k])
            if k == 6:
                L = a.label("w4")
                a.e(f"s_cmp_lg_u32 s{sW}, 4\ns_cbranch_scc1 {L}\ns_lshl_b32 s63, s7, 4\ns_lshl_b32 s63, 0xffff, s63\ns_mov_b32 s62, 1")
                poll(a, sGFL, "s63", 62)
                a.e(f"{L}:")
            a.bar()
            if k == 5:
                verdict_branch()
            if k == 2:
                a.e(f"v_lshlrev_b32 v120, 5, v{vL}\ns_mov_b64 exec, 0xff")
                pre = a.vmem("buffer_load_dwordx2 v[122:123], v120, s[84:87], 0 offen sc1")
                a.e("s_mov_b64 exec, -1")
            for c in {0: [c_ for c_ in (1, 2, 3) if c_ >= UP], 1: [4], 2: [5], 3: [6], 4: [7]}.get(k, []):
                issue(c)
            if k == 3:
                L = a.label("w4s")
                a.e(f"s_cmp_lg_u32 s{sW}, 4\ns_cbranch_scc1 {L}")
                vm = a.vm
                a.wait_vm(pre)
                sig0()
                a.vm = vm
                a.e(f"{L}:")
            B = (k % NS) * SB
            for f in range(3):
                a.e(wrd(WF + 4 * f, B + f * KB, 512))
            a.e("s_waitcnt lgkmcnt(0)")
            for f in range(3):
                a.e(mfma(CSA + 16 * f, ON, WF + 4 * f, "0" if k == 0 else None))
        a.e(f"""
        s_lshr_b32 s60, s{sLW}, 8
        v_and_b32 v{T+3}, 31, v{vL}
        v_lshl_add_u32 v{T+3}, v{T+3}, 4, s60
        v_add_u32 v{T+4}, {CS_L}, v{T+3}
        s_lshr_b32 s60, s{sJ}, 1
        s_lshl_b32 s60, s60, 9
        s_mul_i32 s61, s{sG}, {CSPQ_G}
        s_add_u32 s60, s60, s61
        s_add_u32 s64, s60, {CSPQ}
        s_add_u32 s65, s64, 8192
        s_add_u32 s66, s64, 16384
        s_nop 7
        """)
        for f in range(3):
            split_hilo(a, CSA + 16 * f, T + 5 + f, T, "one")
        a.e("s_mov_b32 exec_lo, -1\ns_mov_b32 exec_hi, 0")
        for f in range(3):
            a.e(f"ds_write_b32 v{T+4}, v{T+5+f} offset:{512*f}")
        for f in range(3):
            a.e(f"buffer_store_dword v{T+5+f}, v{T+3}, s[8:11], s{64+f} offen sc1")
        a.e("s_mov_b64 exec, -1\ns_waitcnt lgkmcnt(0)")
        a.bar()
        a.e(f"s_add_u32 s{sCNT}, s{sCNT}, 4")
    (by_role_lf if OPT['lf'] else by_role)(a, comp, load)

def stage_qkv(a, Q):
    ACC, FR, ST, CSO, TMP, TKO, RO, ON, TOK, NT, D = 8, 56, 72, 88, 100, 110, 114, 118, 122, 32, 4
    RB = ST
    def comp():
        a.e(f"""
        s_lshl_b32 s32, s{sG}, 3
        s_and_b32 s33, s{sJ}, 1
        s_lshl_b32 s33, s33, 2
        s_add_u32 s32, s32, s33
        s_add_u32 s32, s32, s{sW}
        s_lshr_b32 s33, s{sJ}, 1
        s_lshl_b32 s34, s32, 15
        s_add_u32 s34, s34, s{sXN}
        s_lshl_b32 s35, s32, 12
        s_add_u32 s35, s35, s{sSN}
        s_lshl_b32 s36, s33, 9
        s_mul_i32 s37, s{sG}, {CSPQ_G}
        s_add_u32 s36, s36, s37
        s_add_u32 s36, s36, {CSPQ}
        s_add_u32 s37, s36, 8192
        s_add_u32 s42, s36, 16384
        s_lshl_b32 s38, s33, 11
        s_mul_i32 s39, s32, {86*KB}
        s_add_u32 s38, s38, s39
        s_add_u32 s38, s38, s{sQB}
        s_lshl_b32 s40, s33, 18
        s_lshl_b32 s41, s32, 11
        s_add_u32 s40, s40, s41
        s_add_u32 s40, s40, s{sLAY}
        s_add_u32 s40, s40, {KV}
        s_add_u32 s41, s40, 0x20000
        v_bfe_u32 v{TMP+8}, v{vL}, 4, 1
        v_lshlrev_b32 v{TMP+8}, 17, v{TMP+8}
        v_lshrrev_b32 v{TMP+6}, 5, v{vL}
        v_lshl_add_u32 v{TMP+8}, v{TMP+6}, 8, v{TMP+8}
        v_and_b32 v{TMP+6}, 15, v{vL}
        v_lshl_add_u32 v{TMP+8}, v{TMP+6}, 4, v{TMP+8}
        """)
        csp_addr(a, TMP + 9, TMP + 1)
        for sub in range(3):
            a.e(f"v_mov_b32 v{CSO+4*sub+3}, 0")
        for i in range(4):
            a.e(f"v_mov_b32 v{ON+i}, 0x3f803f80")
        a.bar()
        a.stamp(1)
        tp = TokPipe(a, TOK, NT, 32, 34)
        last = [None]
        def ld(s_):
            return lambda: last.__setitem__(0, a.vmem(s_))
        aux = [ld(f"buffer_load_dwordx4 {R(ST+4*q)}, v{vL16}, s[8:11], s35 offen offset:{1024*q} sc1") for q in range(4)]
        aux += [ld(f"buffer_load_dwordx2 v[{CSO+4*i}:{CSO+4*i+1}], v{TMP+9}, s[8:11], s{sr} offen sc1") for i, sr in enumerate((36, 37, 42))]
        vMean, vRstd = TMP, TMP + 2
        def fill_fn():
            a.wait_vm(last[0])
            stats_finish(a, ST, vMean, vRstd, TMP + 1)
            split_hilo(a, vMean, TKO, TMP + 1, "tok")
            for sub in range(3):
                a.e(f"v_perm_b32 v{CSO+4*sub+2}, v{CSO+4*sub+1}, v{CSO+4*sub}, s59")
            a.e(f"v_cmp_gt_u32 vcc, 32, v{vL}\nv_mov_b32 v{vRstd+1}, v{vRstd}\nv_mul_f32 v{TMP+4}, {f32(0.25*1.4426950408889634)}, v{vRstd}\nv_cndmask_b32 v{TMP+6}, 0, v{vRstd}, vcc")
            split_hilo(a, TMP + 6, RO, TMP + 1, "hl")
            a.e(f"v_mov_b32 v{TMP+5}, v{TMP+4}\ns_nop 0")
            a.e(mfma(ACC, CSO, TKO, "0"))
            a.e(mfma(ACC + 16, CSO + 4, TKO))
            a.e(mfma(ACC + 32, TKO, CSO + 8))
            a.e(mfma(RB, RO, ON, "0"))
        def kv_fn():
            for sub in (1, 2):
                for r in range(16):
                    x = ACC + 16 * sub + r
                    a.e(f"v_mul_f32 v{x}, v{x}, v{vRstd if sub == 1 else RB + r}")
                p = ACC + 16 * sub
                for r in range(8):
                    a.e(f"v_cvt_pk_bf16_f32 v{p+r}, v{p+2*r}, v{p+2*r+1}")
                if sub == 1:
                    a.e(f"buffer_store_dwordx4 {R(p)}, v{vL16}, s[8:11], s40 offen sc1")
                    a.e(f"buffer_store_dwordx4 {R(p+4)}, v{vL16}, s[8:11], s41 offen sc1")
                else:
                    a.e(f"buffer_store_dwordx4 {R(p)}, v{TMP+8}, s[8:11], s40 offen offset:1024 sc1")
                    a.e(f"buffer_store_dwordx4 {R(p+4)}, v{TMP+8}, s[8:11], s40 offen offset:1536 sc1")
        sched = [(ks, f) for ks in range(32) for f in (1, 2)] + [(ks, 0) for ks in range(32)]
        frags = [lds_win(Q[ks // 4].lds * KB + ((ks % 4) * 3 + f) * KB) for ks, f in sched]
        fp = FragPipe(a, FR, D, frags)
        def em(ks, f, w, t):
            C = "0" if ks == 0 and f != 0 else None
            a.e(mfma(ACC + 16 * f, w, t, C) if f < 2 else mfma(ACC + 16 * f, t, w, C))
        gemm_loop(a, fp, tp, sched, {32}, em, tok0=int(OPT['qtok0']), aux=aux, **{'A': {}, 'B': dict(aux_late=True, aux_at=set(range(1, 15, 2)))}[OPT['qv']], tok_at=set(range(0, 64, 2)),
                  fills={25: lambda: a.capture(fill_fn), 67: lambda: a.capture(kv_fn)}, per_gap=int(OPT['qpg']))
        a.stamp(2)
        a.e("s_nop 11")
        p = ACC
        for r in range(8):
            a.e(f"v_pk_mul_f32 v[{p+2*r}:{p+2*r+1}], v[{p+2*r}:{p+2*r+1}], v[{TMP+4}:{TMP+5}]")
        for r in range(8):
            a.e(f"v_cvt_pk_bf16_f32 v{p+r}, v{p+2*r}, v{p+2*r+1}")
        stores(a, [f"buffer_store_dwordx4 {R(p)}, v{vL16}, s[8:11], s38 offen",
                   f"buffer_store_dwordx4 {R(p+4)}, v{vL16}, s[8:11], s38 offen offset:1024"])
        signal_wave(a, 1, 3)
    def load():
        a.vm = 0
        for ch in Q:
            a.vm += ch.nblk // 4
            ch.last = a.vm - 1
        only_wave0(a, lambda: dep_half_poll(a, sJ, 0), int(OPT['pw']))
        loader_stage(a, [Q[0:4], Q[4:8]], {})
        a.e(f"s_add_u32 s{sCNT}, s{sCNT}, 4")
    by_role(a, comp, load)

def fast_only(a, fn):
    L = a.label("fo")
    a.e(f"s_cmp_lg_u32 s{sMODE}, 0\ns_cbranch_scc1 {L}")
    vm = a.vm
    fn()
    a.vm = vm
    a.e(f"{L}:")

def warm_attn(a):
    a.e(f"""
    v_lshrrev_b32 v167, 3, v{vL}
    v_lshlrev_b32 v167, 15, v167
    v_and_b32 v166, 7, v{vL}
    v_lshl_add_u32 v167, v166, 7, v167
    s_lshl_b32 s60, s{sG}, 18
    s_lshl_b32 s61, s{sJ}, 10
    s_add_u32 s61, s61, s60
    s_add_u32 s61, s61, {OF}
    v_lshrrev_b32 v166, 5, v{vL}
    v_and_b32 v165, 31, v{vL}
    v_lshlrev_b32 v165, 7, v165
    v_lshl_add_u32 v165, v166, 15, v165
    s_and_b32 s62, s{sJ}, 3
    s_lshl_b32 s63, s62, 16
    s_add_u32 s63, s63, s60
    s_lshr_b32 s64, s{sJ}, 2
    s_lshl_b32 s65, s64, 12
    s_add_u32 s63, s63, s65
    s_add_u32 s63, s63, {XB}
    v_and_b32 v166, 7, v{vL}
    v_lshlrev_b32 v166, 7, v166
    v_bfe_u32 v2, v{vL}, 3, 1
    v_lshl_add_u32 v166, v2, 12, v166
    s_lshl_b32 s60, s{sG}, 15
    s_lshl_b32 s62, s62, 13
    s_add_u32 s60, s60, s62
    s_lshr_b32 s64, s64, 1
    s_lshl_b32 s64, s64, 10
    s_add_u32 s60, s60, s64
    s_add_u32 s60, s60, {STB}
    s_cmp_eq_u32 s{sW}, 5
    s_cselect_b32 s61, s63, s61
    s_cselect_b64 vcc, -1, 0
    v_cndmask_b32 v167, v167, v165, vcc
    s_cmp_eq_u32 s{sW}, 6
    s_cselect_b32 s61, s60, s61
    s_cselect_b64 vcc, -1, 0
    v_cndmask_b32 v167, v167, v166, vcc
    s_lshr_b32 s62, s{sJ}, 1
    s_min_u32 s63, s62, 14
    s_mul_i32 s63, s63, 1536
    s_add_u32 s63, s63, {CSPG}
    s_lshl_b32 s62, s62, 9
    s_mul_i32 s64, s{sG}, {CSPQ_G}
    s_add_u32 s62, s62, s64
    s_add_u32 s62, s62, {CSPQ}
    v_and_b32 v165, 15, v{vL}
    v_min_u32 v165, 11, v165
    v_lshlrev_b32 v165, 7, v165
    v_bfe_u32 v166, v{vL}, 4, 1
    v_mul_u32_u24 v166, {CSPU - CSPG}, v166
    v_add3_u32 v165, v165, v166, s63
    v_and_b32 v166, 3, v{vL}
    v_lshlrev_b32 v166, 7, v166
    v_bfe_u32 v2, v{vL}, 2, 2
    v_min_u32 v2, 2, v2
    v_lshl_add_u32 v166, v2, 13, v166
    v_add_u32 v166, s62, v166
    v_cmp_gt_u32 vcc, 32, v{vL}
    s_nop 1
    v_cndmask_b32 v165, v166, v165, vcc
    s_cmp_eq_u32 s{sW}, {7 if OPT['cswarm'] else 9}
    s_cselect_b32 s61, 0, s61
    s_cselect_b64 vcc, -1, 0
    v_cndmask_b32 v167, v167, v165, vcc
    buffer_load_dword v165, v167, s[8:11], s61 offen
    """)

def warm_h(a, va=8):
    def fn():
        a.e(f"""
        v_min_u32 v{va}, 47, v{vL}
        v_lshlrev_b32 v{va}, 7, v{va}
        s_lshl_b32 s64, s{sG}, 3
        s_and_b32 s65, s{sJ}, 1
        s_lshl_b32 s65, s65, 2
        s_add_u32 s64, s64, s65
        s_lshr_b32 s65, s{sLW}, 10
        s_add_u32 s64, s64, s65
        s_mul_i32 s64, s64, {86*KB}
        s_lshr_b32 s65, s{sJ}, 1
        s_min_u32 s65, s65, 13
        s_mul_i32 s65, s65, 6144
        s_add_u32 s64, s64, s65
        s_add_u32 s64, s64, {HF}
        buffer_load_dword v{va+1}, v{va}, s[8:11], s64 offen
        s_add_u32 s64, s64, 6144
        s_cmp_lg_u32 s{sJ}, 28
        s_cbranch_scc0 .Lwh{a.uid}
        s_cmp_lg_u32 s{sJ}, 29
        s_cbranch_scc1 .Lwe{a.uid}
.Lwh{a.uid}:
        buffer_load_dword v{va+1}, v{va}, s[8:11], s64 offen
.Lwe{a.uid}:
        """)
        a.uid += 1
    fast_only(a, fn)

def prewrite(a):
    D = 168
    a.e(f"""
    s_lshr_b32 s60, s{sLW}, 10
    s_lshl_b32 s61, s{sG}, 3
    s_lshl_b32 s62, s60, 1
    s_add_u32 s62, s62, s61
    s_lshl_b32 s62, s62, 15
    s_lshl_b32 s63, s{sJ}, 10
    s_add_u32 s62, s62, s63
    s_add_u32 s62, s62, {OF}
    buffer_store_dwordx4 {R(D)}, v{vL16}, s[8:11], s62 offen sc1
    s_add_u32 s62, s62, 32768
    buffer_store_dwordx4 {R(D)}, v{vL16}, s[8:11], s62 offen sc1
    s_and_b32 s62, s{sJ}, 3
    s_lshl_b32 s62, s62, 1
    s_add_u32 s62, s62, s61
    s_and_b32 s63, s60, 1
    s_add_u32 s62, s62, s63
    s_lshr_b32 s63, s{sJ}, 2
    s_lshl_b32 s63, s63, 1
    s_lshr_b32 s64, s60, 1
    s_add_u32 s63, s63, s64
    s_lshl_b32 s64, s62, 15
    s_lshl_b32 s65, s63, 11
    s_add_u32 s64, s64, s65
    s_add_u32 s64, s64, {XB}
    buffer_store_dwordx4 {R(D)}, v{vL16}, s[8:11], s64 offen sc1
    buffer_store_dwordx4 {R(D)}, v{vL16}, s[8:11], s64 offen offset:1024 sc1
    s_lshl_b32 s64, s62, 12
    s_lshr_b32 s65, s63, 2
    s_lshl_b32 s65, s65, 10
    s_add_u32 s64, s64, s65
    s_add_u32 s64, s64, {STB}
    buffer_store_dwordx4 {R(D)}, v{vL16}, s[8:11], s64 offen sc1
    s_and_b32 s62, s{sJ}, 1
    s_lshl_b32 s62, s62, 2
    s_add_u32 s62, s62, s61
    s_add_u32 s62, s62, s60
    s_mul_i32 s62, s62, {86*KB}
    s_lshr_b32 s63, s{sJ}, 1
    s_mul_i32 s63, s63, 6144
    s_min_u32 s63, s63, {80*KB}
    s_add_u32 s62, s62, s63
    s_add_u32 s62, s62, {HF}
    s_add_u32 s63, s62, 4096
    """)
    for i in range(6):
        a.e(f"buffer_store_dwordx4 {R(D)}, v{vL16}, s[8:11], s{62 + i // 4} offen offset:{(i % 4) * KB} sc1")

def res_load(a):
    L0 = a.label("rl0"); L1 = a.label("rl1")
    a.e(f"""
    s_cmp_ge_u32 s{sW}, 4
    s_cbranch_scc1 {L0}
    s_lshl_b32 s60, s{sG}, 3
    s_and_b32 s61, s{sJ}, 3
    s_lshl_b32 s61, s61, 1
    s_add_u32 s60, s60, s61
    s_and_b32 s61, s{sW}, 1
    s_add_u32 s60, s60, s61
    s_lshl_b32 s60, s60, 15          ; tb*32K
    s_lshr_b32 s61, s{sJ}, 2
    s_lshl_b32 s61, s61, 1
    s_lshr_b32 s62, s{sW}, 1
    s_add_u32 s61, s61, s62          ; fs
    s_cmp_eq_u32 s{sL}, 0
    s_cbranch_scc1 {L1}
    s_lshl_b32 s61, s61, 11
    s_add_u32 s60, s60, s61
    s_add_u32 s60, s60, s{sXN}
    buffer_load_dwordx4 {R(RS)}, v{vL16}, s[8:11], s60 offen sc1
    buffer_load_dwordx4 {R(RS+4)}, v{vL16}, s[8:11], s60 offen offset:1024 sc1
    s_branch {L0}
{L1}:
    s_load_dwordx2 s[64:65], s[0:1], {A_X}
    s_mov_b32 s66, {2*MB}
    s_mov_b32 s67, 0x00020000
    v_and_b32 v2, 31, v{vL}
    v_lshlrev_b32 v2, 10, v2
    v_lshrrev_b32 v167, 5, v{vL}
    v_lshl_add_u32 v2, v167, 3, v2
    s_lshl_b32 s61, s61, 6
    s_add_u32 s60, s60, s61
    s_waitcnt lgkmcnt(0)
    """)
    for i in range(4):
        a.e(f"buffer_load_dwordx2 v[{RS+2*i}:{RS+2*i+1}], v2, s[64:67], s60 offen offset:{16*i}")
    a.e(f"{L0}:")

def stage_attn(a, early, late, prefetch):
    QA, KF, VF, P, SA, SB, OA, TMP = 8, 24, 32, 48, 56, 72, 88, 152
    vK, vV = 160, 162
    C16 = 172
    def pl():
        a.e(f"""
        s_and_b32 s63, s{sJ}, 30
        s_lshl_b32 s63, 3, s63
        s_add_u32 s62, s{sFB}, 1
        """)
        poll(a, sGFL, "s63", 62)
    Lg = a.label("gsig")
    a.e(f"s_cmp_ge_u32 s{sW}, 4\ns_cbranch_scc1 {Lg}")
    arrive(a, 4, lambda: qkv_sig(a))
    a.e(f"{Lg}:")
    a.e("s_setprio 0")
    a.e(f"""
    s_and_b32 s32, s{sW}, 1
    s_lshr_b32 s33, s{sW}, 1
    s_lshl_b32 s36, s{sG}, 3
    s_lshl_b32 s37, s32, 2
    s_add_u32 s36, s36, s37
    s_add_u32 s34, s36, s33
    s_lshl_b32 s35, s{sJ}, 17
    s_add_u32 s35, s35, s{sLAY}
    s_add_u32 s35, s35, {KV}
    s_lshl_b32 s38, s33, 12
    s_lshl_b32 s46, s{sG}, 14
    s_add_u32 s46, s46, s38
    s_lshl_b32 s53, s{sL}, 11
    s_lshr_b32 s47, s{sJ}, 1
    s_lshl_b32 s47, s47, 7
    s_add_u32 s53, s53, s47
    s_add_u32 s53, s53, {QFL}
    s_lshl_b32 s39, s{sJ}, 10
    s_add_u32 s39, s39, s{sQB}
    s_mul_i32 s36, s36, {86*KB}
    s_add_u32 s39, s39, s36
    """)
    for i in range(4):
        a.e(f"s_add_u32 s37, s33, {i}\ns_and_b32 s37, s37, 3\ns_mul_i32 s37, s37, {86*KB}\ns_add_u32 s{40+i}, s39, s37")
    only_wave0(a, pl, int(OPT['pw']))
    a.bar()
    a.stamp(4)
    a.vm = 0
    def young(fn):
        L = a.label("yg")
        a.e(f"s_cmp_lt_u32 s{sW}, 4\ns_cbranch_scc1 {L}\ns_setprio 3")
        r = fn()
        a.e(f"s_setprio 0\n{L}:")
        return r
    def kv_issue(n=1):
        out = []
        for _ in range(n):
            a.e(f"s_mov_b32 m0, s54\ns_add_u32 s39, s55, s35\ns_add_u32 s54, s54, 16384\ns_add_u32 s55, s55, 16384")
            for b in range(4):
                i = a.vmem(f"buffer_load_dwordx4 v{vL16}, s[8:11], s39 offen offset:{b*KB} sc1 lds")
            a.e("s_and_b32 s55, s55, 0x1ffff")
            out.append(i)
        return out
    a.e(f"s_mov_b32 m0, s38\ns_add_u32 s39, s46, s35")
    a.vmem(f"buffer_load_dwordx4 v{vL16}, s[8:11], s39 offen sc1 lds")
    a.vmem(f"buffer_load_dwordx4 {R(QA)}, v{vL16}, s[8:11], s40 offen sc1")
    a.vmem(f"buffer_load_dwordx4 v{vL16}, s[8:11], s39 offen offset:1024 sc1 lds")
    for i in range(1, 4):
        a.vmem(f"buffer_load_dwordx4 {R(QA+4*i)}, v{vL16}, s[8:11], s{40+i} offen sc1")
    a.vmem(f"buffer_load_dwordx4 v{vL16}, s[8:11], s39 offen offset:2048 sc1 lds")
    kvc = [a.vmem(f"buffer_load_dwordx4 v{vL16}, s[8:11], s39 offen offset:3072 sc1 lds")]
    a.e(f"""
    s_lshl_b32 s37, s33, 12
    v_add_u32 v{vK}, s37, v{vL16}
    v_lshrrev_b32 v2, 5, v{vL}
    v_lshlrev_b32 v{vV}, 8, v2
    v_and_b32 v2, 15, v{vL}
    v_lshl_add_u32 v{vV}, v2, 4, v{vV}
    v_add_u32 v{TMP+7}, 1024, v{vV}
    v_add_u32 v{vV}, s37, v{TMP+7}
    s_mov_b32 s44, 0x0000ffff
    s_mov_b32 s45, 0x0000ffff
    v_and_b32 v2, 27, v{vL}
    v_cmp_eq_u32 vcc, 16, v2
    v_mov_b32 v{TMP}, 0x3f803f80
    s_nop 0
    v_cndmask_b32 v{TMP}, 0, v{TMP}, vcc
    """)
    for i in range(16):
        a.e(f"v_mov_b32 v{VF+i}, v{TMP}")
    XA_ = 228
    def xbase(w):
        return f"s_and_b32 s47, s{w}, 3\ns_mul_i32 s47, s47, 6912\ns_lshr_b32 s49, s{w}, 2\ns_lshl_b32 s49, s49, 16\ns_add_u32 s47, s47, s49\ns_add_u32 s47, s47, {64*KB}"
    def xsetup():
        a.e(xbase(sW))
        a.e(f"v_add_u32 v{XA_}, s47, v{vL16}\nv_add_u32 v{XA_+1}, s47, v{vL4}")
        for i in (1, 2, 3):
            a.e(f"s_sub_u32 s48, s33, {i}\ns_and_b32 s48, s48, 3\ns_lshl_b32 s48, s48, 1\ns_add_u32 s48, s48, s32")
            a.e(xbase(48))
            a.e(f"v_add_u32 v{XA_+2*i}, s47, v{vL16}\nv_add_u32 v{XA_+2*i+1}, s47, v{vL4}")
        a.e(f"""
        s_lshl_b32 s48, s34, 15
        s_lshl_b32 s49, s{sJ}, 10
        s_add_u32 s48, s48, s49
        s_add_u32 s48, s48, s{sLB}
        s_add_u32 s48, s48, {OF}
        """)
    def owrite(i):
        O_ = OA + 16 * i; o = (i - 1) * 2304
        a.e(f"ds_write_b128 v{XA_}, {R(O_)} offset:{o}\nds_write_b128 v{XA_}, {R(O_+4)} offset:{o+1024}\nds_write_b32 v{XA_+1}, v{O_+8} offset:{o+2048}")
    a.e(f"""
    s_lshl_b32 s54, s{sLW}, 2
    s_lshl_b32 s55, s{sG}, 14
    s_add_u32 s55, s55, s54
    s_add_u32 s54, s54, 16384
    s_add_u32 s55, s55, 16384
    s_and_b32 s55, s55, 0x1ffff
    s_waitcnt vmcnt(5)
    """)
    a.stamp(5)
    a.rstamp(26)
    def rdK(slot, o):
        a.e(f"ds_read_b128 {R(KF+4*slot)}, v{vK} offset:{o}")
    def rdV(slot, o):
        a.e(f"s_mov_b64 exec, s[44:45]\nds_read_b128 {R(VF+8*slot)}, v{vV} offset:{o}\nds_read_b128 {R(VF+8*slot+4)}, v{vV} offset:{o+512}\ns_mov_b64 exec, -1")
    rdK(0, 0); rdV(0, 0)
    a.e("s_waitcnt lgkmcnt(0)")
    a.e(mfma(SA, KF, QA, "0"))
    a.e("s_nop 7\ns_nop 3")
    base = "QK E0 E1 E2 E3 E4 E5 PV2p E6 E7 C0 C1 E8 C2 E9 C3 E10 E11 PV1 E12 E13 C4 E14 E15 C5 C6 C7"
    scheds = [base, base, base.replace("QK", "QK rK").replace("PV2p", "PV2p rV"), "W0 " + base]
    def bgpoll():
        Lp = a.label("bgp"); Ld = a.label("bgd")
        a.e(f"""
        s_mov_b32 s61, {BGF}
        s_mov_b32 s60, 0
{Lp}:
        buffer_load_dwordx4 v[168:171], v{vL16}, s[8:11], s61 offen sc1
        s_add_u32 s60, s60, 1
        s_waitcnt vmcnt(0)
        v_and_b32 v168, v168, v169
        v_and_b32 v170, v170, v171
        v_and_b32 v168, v168, v170
        v_cmp_ne_u32 vcc, 1, v168
        s_cmp_gt_u32 s60, 0x4000
        s_cbranch_scc1 {Ld}
        s_cbranch_vccnz {Lp}
{Ld}:
        """)
    def layer1(fn):
        L1 = a.label("l1")
        a.e(f"s_cmp_eq_u32 s{sL}, 0\ns_cbranch_scc1 {L1}")
        vm = a.vm
        fn()
        a.vm = vm
        a.e(f"{L1}:")
    def phase(lp, first=False, lastit=False, boff=0):
        u, p = divmod(lp, 4)
        Sc = SA if (p & 1) == 0 else SB; Sn = SB if (p & 1) == 0 else SA
        Oc = OA + 16 * p; Op = OA + 16 * ((p - 1) & 3)
        for tok in scheds[p].split():
            if lastit and u == 1 and (tok in ("rK", "rV", "W0") or (tok == "QK" and p == 3)):
                continue
            if tok == "QK":
                a.e(mfma(Sn, KF + 4 * ((u if p < 3 else u + 1) & 1), QA + 4 * ((p + 1) & 3), "0"))
            elif tok == "PV1":
                a.e(mfma(Oc, VF + 8 * u, P, "0" if first and u == 0 else None))
                if lastit and lp >= 6: a.e("s_nop 0"); owrite(lp - 5)
            elif tok == "PV2p":
                if not (first and lp == 0): a.e(mfma(Op, VF + 8 * ((u - 1 if p == 0 else u) & 1) + 4, P + 4))
            elif tok[0] == "E": i = int(tok[1:]); a.e(f"v_exp_f32 v{Sc+i}, v{Sc+i}")
            elif tok[0] == "C": i = int(tok[1:]); a.e(f"v_cvt_pk_bf16_f32 v{P+i}, v{Sc+2*i}, v{Sc+2*i+1}")
            elif tok == "rK": rdK(1 - u, boff + (16384 if u else 2048))
            elif tok == "rV": rdV(1 - u, boff + (16384 if u else 2048))
            elif tok[0] == "W": a.e(f"s_waitcnt lgkmcnt({tok[1:]})")
    def adv():
        a.e(f"v_add_u32 v{vK}, 0x4000, v{vK}\nv_add_u32 v{vV}, 0x4000, v{vV}")
    def cold_block(label, back, fn):
        lines = a.capture(fn)
        a.cold.append(f"{label}:\n" + "\n".join(lines) + f"\ns_branch {back}")
    def young_cold(fn):
        Lc = a.label("yc"); Lb = a.label("yb")
        a.e(f"s_cmp_ge_u32 s{sW}, 4\ns_cbranch_scc1 {Lc}\n{Lb}:")
        cold_block(Lc, Lb, lambda: (a.e("s_setprio 3"), fn(), a.e("s_setprio 0")))
    for lp in range(8):
        if lp == 0:
            a.e("s_waitcnt vmcnt(2)")
            young_cold(lambda: (a.e("s_mov_b32 s62, 1"), poll(a, 53, "0xffff", 62, wide=False), kv_issue(1), xsetup(),
                                layer0(a, lambda: [(a.e(f"s_sub_u32 s76, s{sW}, {4*h}"), bg_issue(a, 76, True)) for h in range(2)])))
        if lp == 2:
            Lo = a.label("old")
            a.e(f"s_cmp_ge_u32 s{sW}, 4\ns_cbranch_scc1 {Lo}\ns_waitcnt vmcnt(0)\n{Lo}:")
        if lp == 3:
            res_load(a)
        if lp == 6:
            wait_l(a, 8, 0); a.bar()
            young_cold(lambda: kv_issue(2))
        phase(lp, first=True)
    adv()
    def cpf():
        Lpc = a.label("pc")
        a.e(f"""
        s_getpc_b64 s[60:61]
{Lpc}:
        s_sub_u32 s60, s60, {Lpc} - L_wo_start
        s_subb_u32 s61, s61, 0
        s_lshl_b32 s62, s{sJ}, 2
        s_lshr_b32 s63, s{sLW}, 10
        s_add_u32 s62, s62, s63
        s_lshl_b32 s62, s62, 8
        s_min_u32 s62, s62, L_code_end - L_wo_start - 256
        v_add_u32 v166, s62, v{vL4}
        global_load_dword v165, v166, s[60:61]
        """)
    L_loop = a.label("aloop"); L_w = a.label("aw")
    a.e(f"s_mov_b32 s56, 1\ns_mul_i32 s57, s{sL}, 5\n{L_loop}:")
    for lp in range(16):
        if lp == 6:
            a.e(f"""
            s_waitcnt vmcnt(16)
            s_cmp_lg_u32 s56, s57
            s_cbranch_scc0 {L_w}
            s_waitcnt vmcnt(0)
{L_w}:
            s_barrier
            """)
            a.nbar += 3
            def ev():
                L3 = a.label("e3"); L5 = a.label("e5"); Le = a.label("ee")
                a.e(f"s_cmp_eq_u32 s56, 3\ns_cbranch_scc1 {L3}\ns_cmp_eq_u32 s56, 5\ns_cbranch_scc1 {L5}")
                layer0(a, lambda: [(a.e(f"s_sub_u32 s76, s{sW}, {4*h}"), bg_issue(a, 76, False), bg_pack(a, 76)) for h in range(2)] + [a.e("s_waitcnt vmcnt(0)"), bg_signal(a)])
                kv_issue(2)
                a.e(f"s_branch {Le}\n{L3}:")
                kv_issue(2)
                if OPT["bg30"]:
                    layer0(a, bgpoll)
                    [dma_chunk(a, c) for c in early]
                else:
                    layer1(lambda: [dma_chunk(a, c) for c in early])
                layer0(a, lambda: fast_only(a, lambda: prewrite(a)))
                a.e(f"s_branch {Le}\n{L5}:")
                fast_only(a, lambda: warm_attn(a))
                layer0(a, cpf)
                if not OPT["bg30"]: layer0(a, lambda: (bgpoll(), [dma_chunk(a, c) for c in early]))
                prefetch()
                a.e(f"{Le}:")
            young_cold(ev)
        phase(lp % 8, boff=16384 * (lp // 8))
    a.e(f"v_add_u32 v{vK}, 0x8000, v{vK}\nv_add_u32 v{vV}, 0x8000, v{vV}\ns_add_u32 s56, s56, 2\ns_cmp_lt_u32 s56, 7\ns_cbranch_scc1 {L_loop}")
    for lp in range(8):
        if lp == 4:
            Lo = a.label("old")
            a.e(f"s_cmp_ge_u32 s{sW}, 4\ns_cbranch_scc1 {Lo}")
            xsetup()
            a.e(f"{Lo}:")
        phase(lp, lastit=True)
    a.e("s_setprio 0\ns_nop 0")
    a.e(mfma(OA + 48, VF + 8 + 4, P + 4))
    a.stamp(6)
    a.e("s_nop 11")
    owrite(3)
    a.e("s_waitcnt vmcnt(0) lgkmcnt(0)")
    a.bar()
    for i in (1, 2, 3):
        O_ = OA + 16 * i; o = (i - 1) * 2304
        a.e(f"ds_read_b128 {R(O_)}, v{XA_+2*i} offset:{o}\nds_read_b128 {R(O_+4)}, v{XA_+2*i} offset:{o+1024}\nds_read_b32 v{O_+8}, v{XA_+2*i+1} offset:{o+2048}")
    O = OA
    for i in (1, 2, 3):
        a.e(f"s_waitcnt lgkmcnt({9 - 3*i})")
        for r in range(4):
            a.e(f"v_pk_add_f32 v[{O+2*r}:{O+2*r+1}], v[{O+2*r}:{O+2*r+1}], v[{O+16*i+2*r}:{O+16*i+2*r+1}]")
        a.e(f"v_add_f32 v{O+8}, v{O+8}, v{O+16*i+8}")
    def finish():
        a.e(f"v_rcp_f32 v{TMP+5}, v{O+8}\ns_nop 0")
        for i in range(8):
            a.e(f"v_mul_f32 v{SB+i}, v{O+i}, v{TMP+5}")
        for i in range(4):
            a.e(f"v_cvt_pk_bf16_f32 v{SB+8+i}, v{SB+2*i}, v{SB+2*i+1}")
        stores(a, [f"buffer_store_dwordx4 {R(SB+8)}, v{vL16}, s[8:11], s48 offen"])
    a.vm = 0
    finish()
    st = a.vm - 1
    L_fin = a.label("afin")
    a.e(f"""
    v_max3_f32 v{TMP}, abs(v{O}), abs(v{O+1}), abs(v{O+2})
    v_max3_f32 v{TMP}, v{TMP}, abs(v{O+3}), abs(v{O+4})
    v_max3_f32 v{TMP}, v{TMP}, abs(v{O+5}), abs(v{O+6})
    v_add_f32 v{TMP+1}, v{O}, v{O+1}
    v_add_f32 v{TMP+2}, v{O+2}, v{O+3}
    v_add_f32 v{TMP+3}, v{O+4}, v{O+5}
    v_add_f32 v{TMP+4}, v{O+6}, v{O+7}
    v_max_f32 v{TMP}, v{TMP}, abs(v{O+7})
    v_add_f32 v{TMP+1}, v{TMP+1}, v{TMP+2}
    v_add_f32 v{TMP+3}, v{TMP+3}, v{TMP+4}
    v_add_f32 v{TMP+1}, v{TMP+1}, v{TMP+3}
    s_mov_b32 s50, {f32(2.0**-80)}
    s_mov_b32 s51, {f32(2.0**80)}
    s_mov_b32 s52, {f32(2.0**120)}
    v_cmp_le_f32 s[54:55], s50, v{O+8}
    v_cmp_ge_f32 s[56:57], s51, v{O+8}
    v_cmp_ge_f32 s[58:59], s52, v{TMP}
    v_cmp_o_f32 vcc, v{TMP+1}, v{TMP+1}
    s_nop 3
    s_and_b64 s[54:55], s[54:55], s[56:57]
    s_and_b64 s[58:59], s[58:59], vcc
    s_and_b64 s[54:55], s[54:55], s[58:59]
    s_cmp_eq_u64 s[54:55], -1
    s_cbranch_scc1 {L_fin}
    """)
    L_mx = a.label("amx"); L_re = a.label("are")
    a.e(f"""
    v_mov_b32 v{TMP}, 0xff800000
    s_mov_b32 s46, 0
    s_mov_b32 s47, s35
{L_mx}:
    buffer_load_dwordx4 {R(KF)}, v{vL16}, s[8:11], s47 offen sc1
    s_waitcnt vmcnt(0)
    """)
    a.e(mfma(SA, KF, QA, "0"))
    a.e("s_nop 15")
    for i in range(8):
        a.e(f"v_max3_f32 v{TMP}, v{TMP}, v{SA+2*i}, v{SA+2*i+1}")
    a.e(f"""
    s_add_u32 s47, s47, 2048
    s_add_u32 s46, s46, 1
    s_cmp_lt_u32 s46, 64
    s_cbranch_scc1 {L_mx}
    v_mov_b32 v{TMP+1}, v{TMP}
    s_nop 1
    v_permlane32_swap_b32 v{TMP}, v{TMP+1}
    s_nop 1
    v_max_f32 v{TMP}, v{TMP}, v{TMP+1}
    s_mov_b32 s46, 0
    s_mov_b32 s47, s35
    """)
    for i in range(16):
        a.e(f"v_sub_f32 v{C16+i}, 0, v{TMP}\nv_mov_b32 v{O+i}, 0")
    a.e(f"""
{L_re}:
    buffer_load_dwordx4 {R(KF)}, v{vL16}, s[8:11], s47 offen sc1
    s_mov_b64 exec, s[44:45]
    buffer_load_dwordx4 {R(VF)}, v{TMP+7}, s[8:11], s47 offen sc1
    buffer_load_dwordx4 {R(VF+4)}, v{TMP+7}, s[8:11], s47 offen offset:512 sc1
    s_mov_b64 exec, -1
    s_waitcnt vmcnt(0)
    """)
    a.e(mfma(SA, KF, QA, R(C16, 16)))
    a.e("s_nop 15")
    for i in range(16):
        a.e(f"v_exp_f32 v{SA+i}, v{SA+i}")
    a.e("s_nop 0")
    for i in range(8):
        a.e(f"v_cvt_pk_bf16_f32 v{P+i}, v{SA+2*i}, v{SA+2*i+1}")
    a.e("s_nop 1")
    a.e(mfma(O, VF, P))
    a.e(mfma(O, VF + 4, P + 4))
    a.e(f"""
    s_add_u32 s47, s47, 2048
    s_add_u32 s46, s46, 1
    s_cmp_lt_u32 s46, 64
    s_cbranch_scc1 {L_re}
    s_nop 15
    """)
    vm = a.vm
    finish()
    a.vm = vm
    a.e(f"s_waitcnt vmcnt(0)\n{L_fin}:")
    a.e(f"s_add_u32 s61, s{sFB}, 2\ns_lshr_b32 s62, s{sW10}, 8\nv_mov_b32 v2, s61\ns_add_u32 s62, s62, s{sMYF}\ns_mov_b64 exec, 1\ns_waitcnt vmcnt(0)")
    a.stamp(7)
    a.rstamp(27)
    stores(a, [f"buffer_store_dword v2, v{vZ}, s[8:11], s62 offen"])
    a.e("s_mov_b64 exec, -1")
    a.vm = 0
    by_role(a, lambda: None, lambda: [dma_chunk(a, c) for c in late])

def stage_proj(a, CH, bpos, need, H, src, src_tb_bytes, res, dst, stat, dep_mask, dep_val, sig_val, issue, final_ok, st0):
    ACC, FR, TMP, TOK, NT, D, WR = 12, 44, 84, 100, int(OPT['pnt']), int(OPT['pD']), 192
    KEEP, SEND = ACC + 16, ACC
    XC = XCH if not final_ok else 48 * KB
    vA = 92
    if True:
        def pl():
            if dep_mask == "all":
                m = "-1"
            else:
                a.e(f"s_bfe_u32 s63, s{sJ}, 0x10001\ns_lshl_b32 s63, 0x15555555, s63")
                m = "s63"
            a.e(f"s_add_u32 s62, s{sFB}, {dep_val}")
            poll(a, sGFL, m, 62, wide=8 if dep_mask == "all" else True)
    def comp():
        a.e(f"""
        s_and_b32 s39, s{sW}, 1
        s_lshr_b32 s35, s{sW}, 1
        s_lshl_b32 s32, s{sG}, 3
        s_and_b32 s33, s{sJ}, 3
        s_lshl_b32 s33, s33, 1
        s_add_u32 s32, s32, s33
        s_add_u32 s32, s32, s39
        s_lshr_b32 s33, s{sJ}, 2
        s_mul_i32 s34, s32, {src_tb_bytes}
        s_mul_i32 s40, s35, {H*1024}
        s_add_u32 s34, s34, s40
        s_add_u32 s34, s34, s{sLB}
        s_add_u32 s34, s34, {src}
        s_lshl_b32 s36, s33, 1
        s_add_u32 s36, s36, s35
        s_lshl_b32 s37, s32, 15
        s_lshl_b32 s40, s36, 11
        s_add_u32 s37, s37, s40
        s_mul_i32 s40, s35, 3072
        s_lshl_b32 s41, s35, 10
        s_add_u32 s41, s41, 1024
        v_add_u32 v{vA}, s40, v{vL16}
        v_add_u32 v{vA+1}, s40, v{vW1}
        v_add_u32 v{vA+2}, s40, v{vW2}
        v_add_u32 v{vA+3}, s41, v{vL16}
        v_add_u32 v{vA+4}, s41, v{vW1}
        v_add_u32 v{vA+5}, s41, v{vW2}
        s_lshl_b32 s42, s{sW}, 12
        s_xor_b32 s43, s42, 0x2000
        s_add_u32 s42, s42, {XC}
        s_add_u32 s43, s43, {XC}
        v_add_u32 v{TMP}, s42, v{vL16}
        v_add_u32 v{TMP+1}, s43, v{vL16}
        s_lshl_b32 s44, s32, 12
        s_lshr_b32 s45, s36, 2
        s_lshl_b32 s45, s45, 10
        s_add_u32 s44, s44, s45
        s_and_b32 s45, s36, 3
        s_lshl_b32 s45, s45, 2
        s_add_u32 s44, s44, s45
        {f's_add_u32 s44, s44, s{sSN}' if final_ok else f's_add_u32 s44, s44, s{sLB}'}
        {'' if final_ok else f's_add_u32 s44, s44, {STB}'}
        {f's_add_u32 s37, s37, s{sXN}' if final_ok else f's_add_u32 s37, s37, s{sLB}'}
        {'' if final_ok else f's_add_u32 s37, s37, {XB}'}
        """)
        regch = None
        if final_ok:
            regch = 9
        for r in range(8):
            a.e(f"v_lshlrev_b32 v{KEEP+2*r}, 16, v{RS+r}\nv_and_b32 v{KEEP+2*r+1}, 0xffff0000, v{RS+r}")
        a.bar()
        a.stamp(st0)
        tp = TokPipe(a, TOK, NT, H, 34)
        sched = [(ks, f) for ks in range(H) for f in range(2)]
        frags = []
        for j, f in sched:
            i = 1 - f
            frags.append(("reg", WR + 8 * (j % 4) + 4 * (1 - i)) if j // 4 == regch else lds_win(CH[j // 4].lds * KB + (j % 4) * 4 * KB, (vA + 3 * i, vA + 3 * i + 1, vA + 3 * i + 2)))
        fp = FragPipe(a, FR, D, frags)
        def em(ks, f, w, t):
            a.e(mfma(ACC + 16 * f, w, t, "0" if ks == 0 and f == 0 else None))
        gemm_loop(a, fp, tp, sched, set(8 * c for c in bpos), em, tok0=(int(OPT['ptok0']) if final_ok else int(OPT['wtok0'])), tok_at=set(range(0, 2 * H, 2)))
        a.stamp(st0 + 1)
        RCV = SEND
        a.e("s_nop 10")
        for q in range(4):
            a.e(f"ds_write_b128 v{TMP}, {R(SEND+4*q)} offset:{1024*q}")
        a.e("s_waitcnt lgkmcnt(0)")
        if OPT["hstamps"]: a.stamp(18 if H == 16 else 22)
        a.bar()
        if OPT["hstamps"]: a.stamp(19 if H == 16 else 23)
        for q in range(4):
            a.e(f"ds_read_b128 {R(SEND+4*q)}, v{TMP+1} offset:{1024*q}")
        PK = RS
        for q in range(4):
            a.e(f"s_waitcnt lgkmcnt({3-q})")
            for r in range(2 * q, 2 * q + 2):
                a.e(f"v_pk_add_f32 v[{KEEP+2*r}:{KEEP+2*r+1}], v[{KEEP+2*r}:{KEEP+2*r+1}], v[{RCV+2*r}:{RCV+2*r+1}]")
            for r in range(2 * q, 2 * q + 2):
                a.e(f"v_cvt_pk_bf16_f32 v{PK+r}, v{KEEP+2*r}, v{KEEP+2*r+1}")
        L_fin = a.label("pfin"); L_dn = a.label("pdn")
        if final_ok:
            a.e(f"s_cmp_lg_u32 s{sL}, 0\ns_cbranch_scc1 {L_fin}")
        stores(a, [f"buffer_store_dwordx4 {R(PK)}, v{vL16}, s[8:11], s37 offen",
                   f"buffer_store_dwordx4 {R(PK+4)}, v{vL16}, s[8:11], s37 offen offset:1024"])
        stats_f32(a, KEEP, TMP + 2, TMP + 4)
        stores(a, [f"buffer_store_dword v{TMP+2}, v{vL16}, s[8:11], s44 offen"])
        if final_ok:
            a.e(f"""
            s_branch {L_dn}
{L_fin}:
            v_and_b32 v{TMP}, 31, v{vL}
            v_lshlrev_b32 v{TMP}, 10, v{TMP}
            v_lshrrev_b32 v{TMP+1}, 5, v{vL}
            v_lshl_add_u32 v{TMP}, v{TMP+1}, 4, v{TMP}
            s_lshl_b32 s44, s32, 15
            s_lshl_b32 s45, s36, 6
            s_add_u32 s44, s44, s45
            v_permlane32_swap_b32 v{PK}, v{PK+2}
            v_permlane32_swap_b32 v{PK+1}, v{PK+3}
            v_permlane32_swap_b32 v{PK+4}, v{PK+6}
            v_permlane32_swap_b32 v{PK+5}, v{PK+7}
            buffer_store_dwordx4 {R(PK)}, v{TMP}, s[12:15], s44 offen
            buffer_store_dwordx4 {R(PK+4)}, v{TMP}, s[12:15], s44 offen offset:32
{L_dn}:
            """)
        if OPT["hstamps"]: a.stamp(20 if H == 16 else 24)
        a.bar()
        if OPT["hstamps"]: a.stamp(21 if H == 16 else 25)
        signal_wave(a, sig_val, st0 + 2)
    def load():
        only_wave0(a, pl, int(OPT['pw']))
        if final_ok and OPT['wb'] != '0':
            def wb():
                L = a.label("wb")
                a.e(f"s_cmp_eq_u32 s{sL}, 0\ns_cbranch_scc1 {L}\ns_cmp_ge_u32 s{sJ}, {OPT['wb']}\ns_cbranch_scc1 {L}\nbuffer_wbl2 sc1\n{L}:")
            only_wave0(a, wb, int(OPT['pw']))
        loader_stage(a, need + [None, None], issue, prio=0)
    by_role(a, comp, load)

def dep_half_poll(a, sj, val):
    a.e(f"s_and_b32 s63, s{sj}, 1\ns_lshl_b32 s63, s63, 1\ns_lshl_b32 s63, 0x33333333, s63\ns_add_u32 s62, s{sFB}, {val}")
    poll(a, sGFL, "s63", 62)

def stage_gu(a, G, need, issue):
    ACC, FR, ST, CSO, TMP, TKO, TOK, NT, D = 8, 104, 128, 144, 168, 180, 184, 13, 6
    def comp():
        a.e(f"""
        s_lshl_b32 s32, s{sG}, 3
        s_and_b32 s33, s{sJ}, 1
        s_lshl_b32 s33, s33, 2
        s_add_u32 s32, s32, s33
        s_add_u32 s32, s32, s{sW}
        s_lshr_b32 s33, s{sJ}, 1
        s_lshl_b32 s34, s32, 15
        s_add_u32 s34, s34, s{sLB}
        s_add_u32 s34, s34, {XB}
        s_lshl_b32 s35, s32, 12
        s_add_u32 s35, s35, s{sLB}
        s_add_u32 s35, s35, {STB}
        s_min_u32 s38, s33, 14
        s_mul_i32 s36, s38, 1536
        s_add_u32 s37, s36, {CSPU}
        s_add_u32 s36, s36, {CSPG}
        s_mul_i32 s38, s32, {86*KB}
        s_mul_i32 s39, s33, 6144
        s_add_u32 s38, s38, s39
        s_add_u32 s38, s38, s{sLB}
        s_add_u32 s38, s38, {HF}
        """)
        csp_addr(a, TMP + 9, TMP + 1)
        for f in range(6):
            a.e(f"v_mov_b32 v{CSO+4*f+3}, 0")
        L_idle = a.label("gidle"); L_join = a.label("gjoin")
        if OPT["gidle"]:
            a.e(f"s_cmp_ge_u32 s{sJ}, 30\ns_cbranch_scc1 {L_idle}")
        a.bar()
        a.stamp(11)
        L_short = a.label("gshort")
        if OPT["gshort"]:
            a.e(f"s_cmp_ge_u32 s{sJ}, 28\ns_cbranch_scc1 {L_short}")
        tp = TokPipe(a, TOK, NT, 32, 34)
        last = [None]
        def ld(s_):
            return lambda: last.__setitem__(0, a.vmem(s_))
        aux = [ld(f"buffer_load_dwordx4 {R(ST+4*q)}, v{vL16}, s[8:11], s35 offen offset:{1024*q} sc1") for q in range(4)]
        aux += [ld(f"buffer_load_dwordx2 v[{CSO+4*(2*sub+gu)}:{CSO+4*(2*sub+gu)+1}], v{TMP+9}, s[8:11], s{36+gu} offen offset:{512*sub} sc1") for sub in range(3) for gu in range(2)]
        vMean, vRstd = TMP, TMP + 2
        def fill_fn(nf=6):
            a.wait_vm(last[0])
            stats_finish(a, ST, vMean, vRstd, TMP + 1)
            split_hilo(a, vMean, TKO, TMP + 1, "tok")
            for f in range(nf):
                a.e(f"v_perm_b32 v{CSO+4*f+2}, v{CSO+4*f+1}, v{CSO+4*f}, s59")
            a.e(f"v_mul_f32 v{TMP+4}, v{vRstd}, v{vRstd}\nv_mul_f32 v{TMP+5}, v{vRstd}, v{vRstd}")
            for f in range(nf):
                a.e(mfma(ACC + 16 * f, CSO + 4 * f, TKO))
        TL = int(OPT['gTL'])
        sched = [(ks, f) for ks in range(32 - TL) for f in range(6)] + [(ks, 2 * pr + f) for pr in range(3) for ks in range(32 - TL, 32) for f in range(2)]
        frags = [lds_win(G[ks // 4].lds * KB + ((ks % 4) * 6 + f) * KB) for ks, f in sched]
        fp = FragPipe(a, FR, D, frags)
        def em(ks, f, w, t):
            a.e(mfma(ACC + 16 * f, w, t, "0" if ks == 0 else None))
        def epi(sub, packed):
            Gr = ACC + 32 * sub; U = Gr + 16
            if packed:
                for r in range(8):
                    a.e(f"v_pk_mul_f32 v[{Gr+2*r}:{Gr+2*r+1}], v[{Gr+2*r}:{Gr+2*r+1}], v[{TMP+4}:{TMP+5}]")
                for r in range(8):
                    a.e(f"v_pk_mul_f32 v[{Gr+2*r}:{Gr+2*r+1}], v[{Gr+2*r}:{Gr+2*r+1}], v[{U+2*r}:{U+2*r+1}]")
            else:
                for r in range(16):
                    a.e(f"v_mul_f32 v{Gr+r}, v{Gr+r}, v{TMP+4}")
                for r in range(16):
                    a.e(f"v_mul_f32 v{Gr+r}, v{Gr+r}, v{U+r}")
            for r in range(8):
                a.e(f"v_cvt_pk_bf16_f32 v{Gr+r}, v{Gr+2*r}, v{Gr+2*r+1}")
            def st():
                L = a.label("gsk")
                a.e(f"s_cmp_ge_u32 s33, {15 if sub == 0 else 14}\ns_cbranch_scc1 {L}\ns_add_u32 s39, s38, {2048*sub}")
                stores(a, [f"buffer_store_dwordx4 {R(Gr)}, v{vL16}, s[8:11], s39 offen",
                           f"buffer_store_dwordx4 {R(Gr+4)}, v{vL16}, s[8:11], s39 offen offset:1024"])
                a.e(f"{L}:")
            if packed: st()
            else: a.group(st)
        P0 = 6 * (32 - TL)
        gemm_loop(a, fp, tp, sched, set(range(24, P0 + 1, 24)), em, aux=aux, tok_at=set(range(1, P0, 3)), **{'A': dict(tok0=6), 'B': dict(tok0=3, aux_late=True, aux_at=set(range(0, 30, 3))), 'C': dict(tok0=3, aux_late=True, aux_at=set(range(2, 42, 4))), 'D': dict(tok0=3)}[OPT['guv']],
                  fills={60: lambda: a.capture(fill_fn), P0 + 2 * TL + 3: lambda: a.capture(lambda: epi(0, False)),
                         P0 + 4 * TL + 3: lambda: a.capture(lambda: epi(1, False))}, per_gap=(int(OPT['gpg']), P0, int(OPT['gpt'])), fgrp=int(OPT['gfg']))
        a.e(f"{L_join}:")
        cold = [f"{L_idle}:", f"v_lshlrev_b32 v8, 7, v{vL}", f"s_and_b32 s40, s{sJ}, 1", "s_lshl_b32 s40, s40, 2", f"s_add_u32 s40, s40, s{sW}",
                f"s_mul_i32 s41, s40, {172*KB}", f"s_add_u32 s41, s41, {WPD + 64*KB}", "s_barrier"]
        Lq = a.label("gq"); Lq0 = a.label("gq0")
        cold += [f"s_cmp_eq_u32 s{sL}, 0", f"s_cbranch_scc1 {Lq0}"]
        for i in range(int(OPT["gd"])):
            cold += [f"buffer_load_dword v9, v8, s[8:11], s41 offen", "s_add_u32 s41, s41, 8192"]
        cold += [f"s_branch {Lq}", f"{Lq0}:", f"s_mul_i32 s41, s40, {192*KB}", f"s_add_u32 s41, s41, {WPQ}", f"s_add_u32 s42, s41, {96*KB}"]
        for i in range(int(OPT["gq"])):
            cold += ["buffer_load_dword v9, v8, s[8:11], s41 offen", "s_add_u32 s41, s41, 8192", "buffer_load_dword v9, v8, s[8:11], s42 offen", "s_add_u32 s42, s42, 8192"]
        cold += [f"{Lq}:"] + ["s_barrier"] * 6 + [f"s_branch {L_join}"]
        a.cold.append("\n".join(cold))
        def short():
            a.vm = 0
            tp2 = TokPipe(a, TOK, NT, 32, 34)
            sched2 = [(ks, f) for ks in range(32) for f in range(2)]
            fp2 = FragPipe(a, FR, D, [lds_win(G[ks // 4].lds * KB + ((ks % 4) * 6 + f) * KB) for ks, f in sched2])
            aux2 = [ld(f"buffer_load_dwordx4 {R(ST+4*q)}, v{vL16}, s[8:11], s35 offen offset:{1024*q} sc1") for q in range(4)]
            aux2 += [ld(f"buffer_load_dwordx2 v[{CSO+4*gu}:{CSO+4*gu+1}], v{TMP+9}, s[8:11], s{36+gu} offen sc1") for gu in range(2)]
            gemm_loop(a, fp2, tp2, sched2, set(range(8, 49, 8)), em, tok0=8, aux=aux2, tok_at=set(range(0, 64, 2)),
                      fills={33: lambda: a.capture(lambda: fill_fn(2))}, per_gap=4)
            a.e("s_nop 11")
            epi(0, True)
            signal_wave(a, 4)
            Lq = a.label("gq"); Lq0 = a.label("gq0")
            a.e(f"""
            v_lshlrev_b32 v8, 7, v{vL}
            s_and_b32 s40, s{sJ}, 1
            s_lshl_b32 s40, s40, 2
            s_add_u32 s40, s40, s{sW}
            s_cmp_eq_u32 s{sL}, 0
            s_cbranch_scc1 {Lq0}
            s_mul_i32 s41, s40, {172*KB}
            s_add_u32 s41, s41, {WPD + 64*KB + 8192*int(OPT['gd'])}
            """)
            for i in range(int(OPT["gd2"])):
                a.e("buffer_load_dword v9, v8, s[8:11], s41 offen\ns_add_u32 s41, s41, 8192")
            a.e(f"s_branch {Lq}\n{Lq0}:\ns_mul_i32 s41, s40, {192*KB}\ns_add_u32 s41, s41, {WPQ + 8192*int(OPT['gq'])}\ns_add_u32 s42, s41, {96*KB}")
            for i in range(int(OPT["gq2"])):
                a.e("buffer_load_dword v9, v8, s[8:11], s41 offen\ns_add_u32 s41, s41, 8192\nbuffer_load_dword v9, v8, s[8:11], s42 offen\ns_add_u32 s42, s42, 8192")
            a.e(f"{Lq}:")
        if OPT["gshort"]:
            a.cold.append(f"{L_short}:\n" + "\n".join(a.capture(short)) + f"\ns_branch {L_join}")
        a.stamp(12)
        a.e(f"s_lshr_b32 s40, s{sW}, 1\ns_lshl_b32 s41, s40, 10\ns_mul_i32 s40, s40, 3072\ns_add_u32 s41, s41, 1024")
        for j in range(4):
            a.e(f"s_add_u32 s46, s{sWD}, {(9*16 + j*4)*KB}\ns_add_u32 s47, s46, s41\ns_add_u32 s46, s46, s40")
            a.vmem(f"buffer_load_dwordx4 {R(192+8*j)}, v{vL16}, s[8:11], s47 offen")
            a.vmem(f"buffer_load_dwordx4 {R(192+8*j+4)}, v{vL16}, s[8:11], s46 offen")
        epi(2, True)
        L_done = a.label("gdone")
        a.e(f"{L_done}:")
        a.bar()
        signal_wave(a, 4, 13)
    def load():
        only_wave0(a, lambda: dep_half_poll(a, sJ, 3), int(OPT['pw']))
        loader_stage(a, need + [None], issue)
    by_role(a, comp, load)

def gen_mega(a):
    name = NAME + "_kernel"
    kernel_begin(a, name)
    L_end = a.label("end")
    a.e(f"""
    s_cmp_ge_u32 s2, 256
    s_cbranch_scc1 {L_end}
    s_load_dwordx16 s[36:51], s[0:1], 0
    s_load_dwordx4 s[52:55], s[0:1], {A_DBG}
    s_getpc_b64 s[60:61]
L_pc0:
    s_lshr_b32 s{sJ}, s2, 3
    s_lshl_b32 s62, s{sJ}, 11
    s_min_u32 s62, s62, L_code_end - L_pc0 - 2048
    v_lshl_add_u32 v2, v0, 2, s62
    global_load_dword v240, v2, s[60:61]
    v_and_b32 v{vL}, 63, v0
    v_lshrrev_b32 v2, 6, v0
    v_lshlrev_b32 v{vL16}, 4, v{vL}
    v_readfirstlane_b32 s{sW}, v2
    s_getreg_b32 s70, hwreg(HW_REG_XCC_ID, 0, 4)
    s_mov_b32 s{sMODE}, 0
    s_mov_b32 s{sREDO}, 0
    s_mov_b32 s{sL}, 0
    s_and_b32 s{sG}, s70, 7
    s_and_b32 s{sLW}, s{sW}, 3
    s_lshl_b32 s{sLW}, s{sLW}, 10
    s_mov_b32 s58, {2*MB}
    s_mov_b32 s59, 0x00020000
    s_mov_b32 s82, {512*3072}
    s_mov_b32 s83, 0x00020000
    s_waitcnt lgkmcnt(0)
    s_mov_b32 s56, s36
    s_mov_b32 s57, s37
    s_mov_b32 s80, s38
    s_mov_b32 s81, s39
    """)
    if OPT["stamp"]:
        a.e("v_mov_b32 v255, 0")
    a.stamp(0)
    if OPT["stamp"]:
        a.e("s_memrealtime s[90:91]\ns_waitcnt lgkmcnt(0)\nv_writelane_b32 v255, s90, 62")
    Q = [Chunk(sWQ, c * 12 * KB, 12, l) for c, l in enumerate([0, 12, 24, 36, 48, 60, 72, 84])]
    WOc = [Chunk(sWO, c * 16 * KB, 16, 16 * c) for c in range(4)]
    G = [Chunk(sWG, c * 24 * KB, 24, l) for c, l in enumerate([92, 116, 68, 0, 24, 92, 116, 68])]
    Dn = [Chunk(sWD, c * 16 * KB, 16 if c < 10 else 12, l) for c, l in enumerate([48, 0, 16, 32, 96, 64, 80, 112, 140, 0, 128])]
    def init():
        L5 = a.label("p5")
        a.e(f"s_cmp_lg_u32 s{sREDO}, 0\ns_cbranch_scc1 {L5}")
        srd(a, 8, 54, WS_USED)
        if int(OPT['wsoff']): a.e(f"s_add_u32 s8, s8, {int(OPT['wsoff'])*MB}\ns_addc_u32 s9, s9, 0")
        srd(a, 12, 50, 2 * MB)
        srd(a, 84, 52, 256)
        a.e(f"""
        v_add_u32 v{vW1}, 0x10000, v{vL16}
        v_add_u32 v{vW2}, 0x20000, v{vL16}
        v_lshlrev_b32 v{vL4}, 2, v{vL}
        v_mov_b32 v{vZ}, 0
        s_mov_b32 s{sLAY}, 0
        s_mov_b32 s{sFB}, 1
        s_lshl_b32 s{sW10}, s{sW}, 10
        v_mov_b32 v{vCN}, {CNT}
        v_lshlrev_b32 v{vL32}, 5, v{vL}
        s_lshr_b32 s60, s{sLW}, 8
        v_mov_b32 v{vWF}, s60
        s_mov_b32 s{sCNT}, 0
        s_lshl_b32 s71, s{sG}, 5
        s_cmp_lg_u32 s{sW}, 0
        s_cbranch_scc1 {L5}
        ds_write_b32 v{vCN}, v{vZ}
        ds_write_b32 v{vCN}, v{vZ} offset:4
        s_lshl_b32 s72, s2, 6
        s_add_u32 s72, s72, {FLG}
        s_mov_b64 exec, 0xffff
        buffer_store_dword v{vZ}, v{vL4}, s[8:11], s72 offen sc1
        s_mov_b64 exec, -1
{L5}:
        """)
    def warm():
        Lw = a.label("wm")
        a.e(f"""
        s_or_b32 s60, s{sW}, s{sREDO}
        s_cmp_lg_u32 s60, 0
        s_cbranch_scc1 {Lw}
        s_lshl_b32 s72, 1, s{sJ}
        s_lshr_b32 s73, s70, 3
        s_cmp_lg_u32 s73, 0
        s_cselect_b32 s73, 0x01000000, 0
        s_or_b32 s73, s73, 0x100
        v_mov_b32 v200, s72
        v_mov_b32 v201, s73
        s_mov_b64 exec, 1
        s_waitcnt vmcnt(2)
        buffer_atomic_add_x2 v[200:201], v{vZ}, s[84:87], s71 offen sc0 sc1
        s_mov_b64 exec, -1
{Lw}:
        """)
    def ticket():
        Lw = a.label("tp")
        a.e(f"""
        s_or_b32 s60, s{sW}, s{sREDO}
        s_cmp_lg_u32 s60, 0
        s_cbranch_scc1 {Lw}
        s_waitcnt vmcnt(0)
        v_bfe_u32 v2, v201, 8, 16
        v_mov_b32 v200, {XCH}
        s_mov_b64 exec, 1
        ds_write_b32 v200, v2 offset:4
        s_mov_b64 exec, -1
        s_waitcnt lgkmcnt(0)
{Lw}:
        """)
    def roles():
        init()
        a.e(f"""
        s_lshl_b32 s{sGFL}, s{sG}, 10
        s_add_u32 s{sGFL}, s{sGFL}, {GF}
        s_lshl_b32 s{sMYF}, s{sJ}, 5
        s_add_u32 s{sMYF}, s{sMYF}, s{sGFL}
        s_lshr_b32 s76, s{sJ}, 1
        s_mul_i32 s{sWQ}, s76, {96*KB}
        s_add_u32 s{sWQ}, s{sWQ}, {WPQ}
        s_mov_b32 s{sLB}, 0
        s_mov_b32 s{sQB}, {QF0}
        s_mul_i32 s{sXN}, s{sMODE}, {XA + LAY - XB}
        s_add_u32 s{sXN}, s{sXN}, {XB}
        s_mul_i32 s{sSN}, s{sMODE}, {STA + LAY - STB}
        s_add_u32 s{sSN}, s{sSN}, {STB}
        s_min_u32 s76, s76, 14
        s_mul_i32 s{sWG}, s76, {192*KB}
        s_add_u32 s{sWG}, s{sWG}, {WPG}
        s_lshr_b32 s76, s{sJ}, 2
        s_lshl_b32 s{sWO}, s76, 16
        s_add_u32 s{sWO}, s{sWO}, {WPO}
        s_mul_i32 s{sWD}, s76, {172*KB}
        s_add_u32 s{sWD}, s{sWD}, {WPD}
        """)
    L_roles = a.label("roles")
    a.e(f"{L_roles}:")
    stage_qkv0(a, L_roles, warm, ticket, roles)
    L_layer = a.label("layer")
    a.e(f"{L_layer}:")
    def pf_attn():
        a.e(f"""
        v_lshlrev_b32 v164, 7, v{vL}
        s_and_b32 s64, s{sJ}, 1
        s_mul_i32 s64, s64, {32*KB*int(OPT['pfn'])}
        s_add_u32 s64, s64, s{sWG}
        s_mul_i32 s65, s{sLW}, {8*int(OPT['pfn'])}
        s_add_u32 s64, s64, s65
        s_add_u32 s65, s64, 8192
        s_add_u32 s66, s64, 16384
        """)
        for i in range(int(OPT['pfn'])):
            l2_prefetch(a, 165, 164, 64 + i)
    def pf(sbase, share_mask, share_bytes, off, n):
        def fn():
            a.e(f"""
            s_and_b32 s64, s{sJ}, {share_mask}
            s_mul_i32 s64, s64, {share_bytes}
            s_mul_i32 s65, s{sLW}, {share_bytes // 4 // KB}
            s_add_u32 s64, s64, s65
            s_add_u32 s64, s64, s{sbase}
            s_add_u32 s64, s64, {off}
            """)
            for i in range(n):
                a.vmem(f"buffer_load_dwordx4 v[8:11], v{vL16}, s[8:11], s64 offen offset:{i*KB}")
        return fn
    pfd = [pf(sWD, 3, 24 * KB, 80 * KB + i * 2 * KB, 2) for i in range(3)]
    pfq = [(pf(sWQ, 1, 48 * KB, i * 3 * KB, 3),) for i in range(4)]
    pf9 = pf(sWD, 3, 4 * KB, 144 * KB, 1)
    pfD = [pf(sWD, 3, 44 * KB, i * 4 * KB, 4 if i < 2 else 3) for i in range(3)]
    if not OPT["pfd"]: pfd = [lambda: None] * 3
    if not OPT["pfq"]: pfq = [(lambda: None,)] * 4
    stage_attn(a, WOc, [G[0]], pf_attn)
    a.e("L_wo_start:")
    stage_proj(a, WOc, [], [None], 16, OF, 32768, XA, XB, STB, "all", 2, 3, {0: [G[1], G[2]], 2: [G[3], G[4]]}, False, 8)
    wh = lambda: warm_h(a)
    last = [Dn[4], Dn[5], Dn[6], Dn[7], Dn[10]]
    plans = {
        'a': {2: [G[5]], 3: [G[6], Dn[8]], 4: [G[7], Dn[0], pfq[0]], 5: [Dn[1], pf9, pfq[1]], 6: [wh, Dn[2], Dn[3], pfq[2], pfq[3]], 7: last},
        'b': {2: [G[5], pfq[0]], 3: [G[6], Dn[8], pfq[1]], 4: [G[7], Dn[0], pfq[2]], 5: [Dn[1], pf9, pfq[3]], 6: [wh, Dn[2], Dn[3]], 7: last},
        'c': {2: [G[5]], 3: [G[6], Dn[8]], 4: [G[7], Dn[0]], 5: [Dn[1], pf9], 6: [wh, Dn[2], Dn[3]], 7: last + [(lambda: None,)]},
        'd': {2: [G[5]], 3: [G[6], Dn[8]], 4: [G[7], Dn[0], pfq[0], pfq[1]], 5: [wh, Dn[1], pf9, pfq[2], pfq[3]], 6: [Dn[2], Dn[3]], 7: last},
    }
    stage_gu(a, G, G[:6] + [G[6:8]], plans[OPT['gp']])
    stage_proj(a, Dn, [3, int(OPT['qb'])], [Dn[:9] + [Dn[10]], None, None], 43, HF, 86 * KB, XB, XA + LAY, STA + LAY, "gu", 4, 5,
               {2: [(c,) for c in Q[:4]], 4: [(c,) for c in Q[4:]]}, True, 14)
    L_exit = a.label("exit")
    a.e(f"""
    s_cmp_lg_u32 s{sL}, 0
    s_cbranch_scc1 {L_exit}
    """)
    a.e(f"""
    s_mov_b32 s{sL}, 1
    s_mov_b32 s{sLAY}, {LAY}
    s_mul_i32 s{sLB}, s{sMODE}, {LAY}
    s_mul_i32 s{sQB}, s{sMODE}, {QF1 - HF}
    s_add_u32 s{sQB}, s{sQB}, {HF}
    s_add_u32 s{sFB}, s{sFB}, 5
    """)
    stage_qkv(a, Q)
    a.e(f"s_branch {L_layer}\n{L_exit}:")
    if OPT["stamp"]:
        a.stamp(17)
        a.e(f"""
        s_lshl_b32 s92, s2, 3
        s_add_u32 s92, s92, s{sW}
        s_lshl_b32 s92, s92, 8
        s_add_u32 s92, s92, {DBG}
        s_memrealtime s[90:91]
        s_waitcnt lgkmcnt(0)
        v_writelane_b32 v255, s90, 63
        v_writelane_b32 v255, s{sG}, 30
        v_writelane_b32 v255, s{sJ}, 31
        v_writelane_b32 v255, s{sMODE}, 29
        buffer_store_dword v255, v{vL4}, s[8:11], s92 offen
        """)
    if OPT["hstamp"]:
        Lh = a.label("hs")
        a.e(f"""
        s_cmp_lg_u32 s2, 77
        s_cbranch_scc1 {Lh}
        s_cmp_lg_u32 s{sW}, 0
        s_cbranch_scc1 {Lh}
        s_load_dwordx2 s[84:85], s[0:1], {A_DBG}
        s_mov_b32 s86, 256
        s_mov_b32 s87, 0x00020000
        v_readlane_b32 s60, v255, 0
        v_readlane_b32 s61, v255, 62
        v_readlane_b32 s62, v255, 63
        s_sub_u32 s62, s62, s61
        s_waitcnt lgkmcnt(0)
        v_mov_b32 v2, s62
        s_mov_b64 exec, 1
        buffer_store_dword v2, v{vZ}, s[84:87], 0 offen offset:8
        """)
        for k, sl in enumerate([1, 3, 5, 7, 16, 32+3, 32+5, 32+7, 32+10, 32+13, 32+17]):
            dw = [3, 4, 5, 6, 7, 10, 11, 12, 13, 14, 15][k]
            a.e(f"v_readlane_b32 s61, v255, {sl}\ns_sub_u32 s61, s61, s60\nv_mov_b32 v2, s61\nbuffer_store_dword v2, v{vZ}, s[84:87], 0 offen offset:{4*dw}\ns_nop 1")
        a.e(f"{Lh}:")
    a.e(f"{L_end}:\ns_endpgm")
    for c in a.cold:
        a.e(c)
    a.e("L_code_end:")
    return kd(name, 256, 100)

DOC = '''; Persistent single-launch implementation (one 512-thread workgroup per CU, all 256 co-resident).
;  * 8 groups of 32 workgroups; group = 256 rows.  Roles are (die id read from the hardware register, member index).
;    so die-local hand-offs are only used between workgroups that really share a die.  K/V and repacked weights always
;  * LayerNorm is applied algebraically: rstd * (x @ W - mean * colsum(W)), mean/colsum as an extra hi/lo-split MFMA step.
'''
def build():
    a = Asm()
    k2 = gen_mega(a)
    hdr = DOC + f"; @launch grid=(256,1,1) block=(512,1,1) lds={LDS_BYTES}\n" + '.amdgcn_target "amdgcn-amd-amdhsa--gfx950"\n.text\n'
    return hdr + a.text() + '.section .rodata,"a"\n' + k2

if __name__ == "__main__":
    args = sys.argv[1:]
    out = f"cdna_kernels/{NAME}.s"
    for x in args:
        if x.startswith("--"):
            k, _, v = x[2:].partition("=")
            OPT[k] = v if k in ("force_mode", "wb") else (v == "" or v == "1") if v in ("", "0", "1") else v
        else:
            out = x
    open(out, "w").write(build())
```

```python
import sys, struct

NAME = "interleave_layers__mha_block__glu_gated_bilinear__prompt"
MB = 1 << 20
KB = 1024
XA = 0
XB = 2 * MB
OF = 4 * MB
QF = 6 * MB
KV = 8 * MB
HF = 12 * MB
STA = 18 * MB
STB = 18 * MB + 256 * KB
LAY = 20 * MB
WPQ = 56 * MB
WPQ_G = 1536 * KB
WPO = 46 * MB
WPG = 47 * MB
WPD = 50 * MB
CSPQ = 44 * MB
CSPQ_G = 24 * KB
CSPG = 44 * MB + 256 * KB
CSPU = CSPG + 24 * KB
FLG = 52 * MB + 64 * KB
GF = FLG
QFL = FLG + 8192
BGF = FLG + 8192 + 4096
FLG_BYTES = 8192
DBG = 53 * MB
QF0 = 68 * MB
QF1 = 74 * MB
WS_USED = 80 * MB
A_X, A_WQKV, A_WO, A_BX, A_WG, A_WU, A_WD, A_OUT, A_DBG, A_WS = [8 * i for i in range(10)]

OPT = dict(q0d='20', q0g='5', wq='0', bgs='b', pw_on=True, dneed=True, dw0=True, coop='x', q0e='x', pwkv=False, pwkv0=False, pace='x', g34='w', gpg='2', gpt='4', gfg='2', gD='6', gTL='8', qpg='4', qD='4', tlb=False, wsoff='0', wb='0', gshort=False, gq2='2', gd2='2', bg30=False, lf=True, codepf2=True, pw='7', gidle=True, gq='3', gd='6', pfn='3', l0o='a', cswarm=False, gp='c', pf0=True, pf1=True, pwph='7', wtok0='12', codepf=True, qb='9', bgph='46', bgt='23', aprio='no', guv='B', qv='A', hstamps=False, q0up='2', q0la='7', qstamp=False, hstamp=False, bgnt=False, astamp=False, force_mode=0, lprio=True, x_nod89=False, x_nobs=False, dstamp=False, ptok0="12", pnt="20", qtok0="10", pD="6", pfplan="g", stamp=False, force_slow=False, vmask=True, ones_all=False, pfa="128", pfa_t="21", pfq=True, pfd=True, kvnt=False)

def f32(x):
    return hex(struct.unpack("<I", struct.pack("<f", x))[0])

class Asm:
    def __init__(self):
        self.lines = []
        self.vm = 0
        self.uid = 0
        self.nbar = 0
        self.nstamp = 0
        self.stamp_names = []
        self.cold = []
    def e(self, s):
        for l in s.strip("\n").split("\n"):
            l = l.strip()
            if not l:
                continue
            self.lines.append(("" if l.endswith(":") else "    ") + l)
    def vmem(self, s):
        self.e(s)
        self.vm += 1
        return self.vm - 1
    def wait_vm(self, idx):
        n = self.vm - idx - 1
        assert n >= 0
        self.e(f"s_waitcnt vmcnt({min(n, 63)})")
    def bar(self):
        self.e("s_barrier")
        self.nbar += 1
    def label(self, base):
        self.uid += 1
        return f"L_{base}_{self.uid}"
    def stamp(self, idx):
        if OPT["stamp"]:
            self.e(f"s_memtime s[90:91]\ns_waitcnt lgkmcnt(0)\ns_lshl_b32 s92, s24, 5\ns_add_u32 m0, s92, {idx}\ns_nop 3\nv_writelane_b32 v255, s90, m0")
    def capture(self, fn):
        save, vm, nb = self.lines, self.vm, self.nbar
        self.lines = []
        fn()
        out = [l.strip() for l in self.lines]
        self.lines, self.vm, self.nbar = save, vm, nb
        return out
    def group(self, fn):
        n0 = len(self.lines)
        fn()
        g = "\n".join(l.strip() for l in self.lines[n0:])
        del self.lines[n0:]
        self.lines.append("@G" + g)
    def rstamp(self, idx):
        if OPT["stamp"]:
            self.e(f"s_memrealtime s[90:91]\ns_waitcnt lgkmcnt(0)\ns_lshl_b32 s92, s24, 5\ns_add_u32 m0, s92, {idx}\ns_nop 3\nv_writelane_b32 v255, s90, m0")
    def text(self):
        return "\n".join(self.lines) + "\n"

def srd(a, d, ptr, size):
    a.e(f"s_mov_b32 s{d}, s{ptr}\ns_mov_b32 s{d+1}, s{ptr+1}\ns_mov_b32 s{d+2}, {hex(size)}\ns_mov_b32 s{d+3}, 0x00020000")

def kernel_begin(a, name):
    a.e(f".globl {name}\n.p2align 8\n.type {name},@function\n{name}:")
    a.vm = 0

def kd(name, vgpr, sgpr=96):
    acc = (vgpr + 3) // 4 * 4
    return f""".p2align 6
.amdhsa_kernel {name}
  .amdhsa_next_free_vgpr {vgpr}
  .amdhsa_next_free_sgpr {sgpr}
  .amdhsa_accum_offset {acc}
  .amdhsa_group_segment_fixed_size 0
  .amdhsa_kernarg_size 80
  .amdhsa_user_sgpr_count 2
  .amdhsa_user_sgpr_kernarg_segment_ptr 1
  .amdhsa_system_sgpr_workgroup_id_x 1
.end_amdhsa_kernel
"""

def R(b, n=4):
    return f"v[{b}:{b+n-1}]"

def mfma(d, A, B, C=None):
    c = R(d, 16) if C is None else C
    return f"v_mfma_f32_32x32x16_bf16 {R(d,16)}, {R(A)}, {R(B)}, {c}"

def tr_addr(a, vdst, vL, tmp, rs=6):
    a.e(f"""
    v_lshrrev_b32 v{tmp}, 5, v{vL}
    v_lshlrev_b32 v{vdst}, {rs+2}, v{tmp}
    v_bfe_u32 v{tmp}, v{vL}, 2, 2
    v_lshl_add_u32 v{vdst}, v{tmp}, {rs}, v{vdst}
    v_bfe_u32 v{tmp}, v{vL}, 4, 1
    v_lshl_add_u32 v{vdst}, v{tmp}, 5, v{vdst}
    v_and_b32 v{tmp}, 3, v{vL}
    v_lshl_add_u32 v{vdst}, v{tmp}, 3, v{vdst}
    """)

def stats_compute(a, P, nP, tmp, vS, vQ):
    a.e(f"v_mov_b32 v{vS}, 0\nv_mov_b32 v{vQ}, 0")
    for i in range(nP):
        a.e(f"""
        v_lshlrev_b32 v{tmp}, 16, v{P+i}
        v_and_b32 v{tmp+1}, 0xffff0000, v{P+i}
        v_add_f32 v{vS}, v{vS}, v{tmp}
        v_fmac_f32 v{vQ}, v{tmp}, v{tmp}
        v_add_f32 v{vS}, v{vS}, v{tmp+1}
        v_fmac_f32 v{vQ}, v{tmp+1}, v{tmp+1}
        """)
    a.e(f"""
    s_nop 1
    v_permlane32_swap_b32 v{vS}, v{vQ}
    s_nop 1
    v_add_f32 v{vS}, v{vS}, v{vQ}
    """)

def stats_f32(a, X, vS, vQ):
    a.e(f"v_pk_add_f32 v[{vS}:{vS+1}], v[{X}:{X+1}], v[{X+2}:{X+3}]")
    a.e(f"v_pk_mul_f32 v[{vQ}:{vQ+1}], v[{X}:{X+1}], v[{X}:{X+1}]")
    for r in range(1, 8):
        if r >= 2:
            a.e(f"v_pk_add_f32 v[{vS}:{vS+1}], v[{vS}:{vS+1}], v[{X+2*r}:{X+2*r+1}]")
        a.e(f"v_pk_fma_f32 v[{vQ}:{vQ+1}], v[{X+2*r}:{X+2*r+1}], v[{X+2*r}:{X+2*r+1}], v[{vQ}:{vQ+1}]")
    a.e(f"""
    v_add_f32 v{vS}, v{vS}, v{vS+1}
    v_add_f32 v{vQ}, v{vQ}, v{vQ+1}
    s_nop 1
    v_permlane32_swap_b32 v{vS}, v{vQ}
    s_nop 1
    v_add_f32 v{vS}, v{vS}, v{vQ}
    """)

def stats_finish(a, ST, vMean, vRstd, tmp, adds=True):
    for w in ((8, 4, 2, 1) if adds else ()):
        for i in range(w):
            a.e(f"v_add_f32 v{ST+i}, v{ST+i}, v{ST+i+w}")
    a.e(f"""
    v_mov_b32 v{tmp}, v{ST}
    s_nop 1
    v_permlane32_swap_b32 v{ST}, v{tmp}
    s_nop 1
    v_mul_f32 v{vMean}, {f32(-1.0/512)}, v{ST}
    v_mul_f32 v{tmp}, {f32(1.0/512)}, v{tmp}
    v_fma_f32 v{tmp}, -v{vMean}, v{vMean}, v{tmp}
    v_max_f32 v{tmp}, 0, v{tmp}
    v_add_f32 v{tmp}, {f32(1e-5)}, v{tmp}
    v_rsq_f32 v{vRstd}, v{tmp}
    s_nop 0
    """)

def split_hilo(a, vsrc, vdst, tmp, mode):
    a.e(f"""
    v_cvt_pk_bf16_f32 v{vdst}, v{vsrc}, v{vsrc}
    v_and_b32 v{tmp}, 0xffff0000, v{vdst}
    v_sub_f32 v{tmp}, v{vsrc}, v{tmp}
    """)
    if mode == "tok":
        a.e(f"v_mov_b32 v{vdst+1}, v{vdst}\nv_cvt_pk_bf16_f32 v{vdst+2}, v{tmp}, v{tmp}\nv_mov_b32 v{vdst+3}, 0")
    elif mode == "hl":
        a.e(f"v_cvt_pk_bf16_f32 v{vdst}, v{vsrc}, v{tmp}\nv_mov_b32 v{vdst+1}, 0\nv_mov_b32 v{vdst+2}, 0\nv_mov_b32 v{vdst+3}, 0")
    else:
        a.e(f"v_cvt_pk_bf16_f32 v{vdst}, v{vsrc}, v{tmp}")

sW, sG, sJ, sREDO, sQV, sMODE, sLAY, sL = 16, 18, 19, 20, 21, 22, 23, 24
sFB = 25
sWQ, sWO, sWG, sWD = 26, 27, 28, 29
sLW = 30
sGFL = 31
sW10 = 17
sLB, sXN, sSN, sQB = 3, 79, 88, 77
sMYF = 21
vCN = 0
vL32, vWF = 254, 253
RS = 236
PR = 244
vL, vL16, vW1, vW2, vL4, vZ = 1, 3, 4, 5, 6, 7
XCH = 140 * KB
LDS_BYTES = 160 * KB

class Chunk:
    def __init__(self, sbase, goff, nblk, lds):
        self.sbase, self.goff, self.nblk, self.lds = sbase, goff, nblk, lds
        self.last = None

def dma_chunk(a, ch, nw=4, pace=None):
    nb = ch.nblk // nw
    assert nb * nw == ch.nblk
    sw = sLW if nw == 4 else sW10
    a.e(f"s_mul_i32 s64, s{sw}, {nb}\ns_add_u32 s65, s64, s{ch.sbase}")
    for b0 in range(0, nb, 4):
        a.e(f"s_add_u32 m0, s64, {ch.lds*KB + b0*KB}\ns_add_u32 s66, s65, {ch.goff + b0*KB}")
        for b in range(b0, min(nb, b0 + 4)):
            ch.last = a.vmem(f"buffer_load_dwordx4 v{vL16}, s[8:11], s66 offen offset:{(b-b0)*KB} lds")
            if pace is not None: a.e(f"s_waitcnt vmcnt({pace})")

def l2_prefetch(a, vdst, vaddr, soff):
    return a.vmem(f"buffer_load_dword v{vdst}, v{vaddr}, s[8:11], s{soff} offen")

def lds_win(off, bases=(vL16, vW1, vW2)):
    return bases[off >> 16], off & 0xffff

class FragPipe:
    def __init__(self, a, base, D, frags):
        self.a, self.base, self.D, self.frags = a, base, D, frags
        self.issued = 0
        self.ops = 0
        self.cum = []
        self.slots = []
    def slot(self, g):
        return self.slots[g]
    def issue(self):
        g = self.issued
        if g >= len(self.frags):
            return
        va, off = self.frags[g]
        if va == "reg":
            self.slots.append(off)
        else:
            self.slots.append(self.base + 4 * (g % self.D))
            self.a.e(f"ds_read_b128 {R(self.slots[g])}, v{va} offset:{off}")
            self.ops += 1
        self.cum.append(self.ops)
        self.issued += 1
    def wait(self, g):
        if self.frags[g][0] == "reg" and (g == 0 or self.frags[g - 1][0] == "reg"):
            return
        self.a.e(f"s_waitcnt lgkmcnt({self.ops - self.cum[g]})")

def stores(a, lst):
    L1 = a.label("sts"); L2 = a.label("std")
    a.e(f"s_cmp_lg_u32 s{sMODE}, 0\ns_cbranch_scc1 {L1}")
    for s in lst:
        a.vmem(s)
    a.e(f"{L2}:")
    a.cold.append(f"{L1}:\n" + "\n".join(s + " sc1" for s in lst) + f"\ns_branch {L2}")

def poll(a, soff, mask_lo, starget, wide=True):
    Lp = a.label("poll"); Ld = a.label("polld")
    def ld(r):
        if wide == 8:
            q = PR if r == PR else 224
            return f"buffer_load_dwordx4 {R(q)}, v{vL32}, s[8:11], s{soff} offen sc1\nbuffer_load_dwordx4 {R(q+4)}, v{vL32}, s[8:11], s{soff} offen offset:16 sc1"
        if wide:
            return f"buffer_load_dwordx4 {R(r)}, v{vL32}, s[8:11], s{soff} offen sc1"
        return f"buffer_load_dword v{r}, v{vL4}, s[8:11], s{soff} offen sc1"
    def chk(r):
        if wide == 8:
            q = PR if r == PR else 224
            return f"v_min3_u32 v{q}, v{q}, v{q+1}, v{q+2}\nv_min3_u32 v{q+3}, v{q+3}, v{q+4}, v{q+5}\nv_min3_u32 v{q}, v{q}, v{q+6}, v{q+7}\nv_min_u32 v{q}, v{q}, v{q+3}\nv_cmp_gt_u32 vcc, s{starget}, v{q}"
        pre = f"v_min3_u32 v{r}, v{r}, v{r+1}, v{r+2}\nv_min_u32 v{r}, v{r}, v{r+3}\n" if wide else ""
        return pre + f"v_cmp_gt_u32 vcc, s{starget}, v{r}"
    a.e(f"""
    s_mov_b32 exec_lo, {mask_lo}
    s_mov_b32 exec_hi, 0
    s_mov_b32 s60, 0
    {ld(PR)}
{Lp}:
    {ld(PR+4)}
    s_waitcnt vmcnt({2 if wide == 8 else 1})
    {chk(PR)}
    s_add_u32 s60, s60, 1
    s_cmp_gt_u32 s60, 0x4000
    s_cbranch_vccz {Ld}
    {ld(PR)}
    s_waitcnt vmcnt({2 if wide == 8 else 1})
    {chk(PR+4)}
    s_cbranch_scc1 {Ld}
    s_nop 0
    s_cbranch_vccnz {Lp}
{Ld}:
    s_mov_b64 exec, -1
    """)

def signal_wave(a, val_off, stamp=None):
    a.e(f"s_add_u32 s61, s{sFB}, {val_off}\nv_mov_b32 v2, s61\ns_mov_b64 exec, 1\ns_waitcnt vmcnt(0)")
    if stamp is not None: a.stamp(stamp)
    vm = a.vm
    stores(a, [f"buffer_store_dword v2, v{vWF}, s[8:11], s{sMYF} offen"])
    a.vm = vm
    a.e("s_mov_b64 exec, -1")

def signal_group(a, val_off):
    a.e(f"s_add_u32 s61, s{sFB}, {val_off}\ns_mov_b64 exec, 15\nv_mov_b32 v2, s61")
    stores(a, [f"buffer_store_dword v2, v{vL4}, s[8:11], s{sMYF} offen"])
    a.e("s_mov_b64 exec, -1")

CNT = LDS_BYTES - 16
sCNT = 78
def arrive(a, n, sig, second=False):
    L = a.label("arr")
    a.e(f"""
    v_mov_b32 v2, 1
    s_mov_b64 exec, 1
    ds_add_rtn_u32 v2, v{vCN}, v2{' offset:4' if second else ''}
    {f's_mov_b32 s61, {n-1}' if second else f's_add_u32 s{sCNT}, s{sCNT}, {n}'}
    {'' if second else f's_sub_u32 s61, s{sCNT}, 1'}
    s_waitcnt lgkmcnt(0)
    v_readfirstlane_b32 s62, v2
    s_mov_b64 exec, -1
    s_cmp_lg_u32 s61, s62
    s_cbranch_scc1 {L}
    """)
    vm = a.vm
    sig()
    a.vm = vm
    a.e(f"{L}:")

def by_role_lf(a, comp, load):
    Lc = a.label("cp"); Le = a.label("se")
    a.e(f"s_cmp_lt_u32 s{sW}, 4\ns_cbranch_scc1 {Lc}")
    n0 = a.nbar
    load()
    nl = a.nbar - n0
    vm = a.vm
    a.e(f"s_branch {Le}\n{Lc}:")
    a.nbar = n0
    a.vm = 0
    comp()
    assert a.nbar - n0 == nl
    a.vm = vm
    a.e(f"{Le}:")

def by_role(a, comp, load):
    Ll = a.label("ld"); Le = a.label("se")
    a.e(f"s_cmp_ge_u32 s{sW}, 4\ns_cbranch_scc1 {Ll}")
    n0 = a.nbar
    vm_save = a.vm
    a.vm = 0
    comp()
    nc = a.nbar - n0
    a.e(f"s_branch {Le}\n{Ll}:")
    a.nbar = n0
    a.vm = vm_save
    load()
    assert a.nbar - n0 == nc, (a.nbar - n0, nc)
    a.e(f"{Le}:")

def only_wave0(a, fn, w=0):
    L = a.label("w0")
    a.e(f"s_cmp_lg_u32 s{sW}, {w}\ns_cbranch_scc1 {L}")
    vm = a.vm
    fn()
    a.vm = vm
    a.e(f"{L}:")

def loader_stage(a, need, issue, extra=None, cond_first=False, prio=0):
    def emit(with_cond):
        a.e(f"s_setprio {prio}")
        for k in range(len(need)):
            if extra and k in extra and with_cond:
                extra[k]()
            if need[k]:
                a.wait_vm(max(c.last for c in (need[k] if isinstance(need[k], list) else [need[k]])))
            a.bar()
            for ch in issue.get(k, []):
                if isinstance(ch, tuple):
                    if with_cond:
                        ch[0]() if callable(ch[0]) else dma_chunk(a, ch[0])
                elif callable(ch):
                    ch()
                else:
                    dma_chunk(a, ch)
    if any(isinstance(ch, tuple) for l in issue.values() for ch in l):
        L1 = a.label("ldl"); L2 = a.label("lde")
        vm, nb = a.vm, a.nbar
        a.e(f"s_cmp_lg_u32 s{sL}, 0\ns_cbranch_scc1 {L1}")
        emit(True)
        a.e(f"s_branch {L2}\n{L1}:")
        a.vm, a.nbar = vm, nb
        if cond_first:
            a.vm = 0
            for l in need:
                for ch in (l or []):
                    a.vm += ch.nblk // 4
                    ch.last = a.vm - 1
        emit(False)
        a.e(f"{L2}:")
    else:
        emit(True)

class TokPipe:
    def __init__(self, a, base, NT, n, soff):
        self.a, self.base, self.NT, self.n, self.soff = a, base, NT, n, soff
        self.issued = 0
        self.idx = []
    def slot(self, k):
        return self.base + 4 * (k % self.NT)
    def issue(self):
        k = self.issued
        if k >= self.n:
            return
        self.idx.append(self.a.vmem(f"buffer_load_dwordx4 {R(self.slot(k))}, v{vL16}, s[8:11], s{self.soff} offen offset:{1024*(k%4)} sc1"))
        if k % 4 == 3:
            self.a.e(f"s_add_u32 s{self.soff}, s{self.soff}, 4096")
        self.issued += 1
    def wait(self, k):
        self.a.wait_vm(self.idx[k])

def gemm_loop(a, fp, tp, sched, bars, emit_mfma, tok0=6, aux=None, tok_at=None, fills=None, per_gap=3, stamps=None, aux_late=False, fgrp=2, tgrp=2, aux_at=None):
    def ensure(g):
        if g in bars:
            a.bar()
    for _ in range(tok0):
        tp.issue()
    aux = list(aux or [])
    if not aux_late:
        while aux:
            aux.pop(0)()
    for g in range(fp.D):
        ensure(fp.issued); fp.issue()
    q = []
    waited = -1
    fwaited = -1
    for g, (ks, f) in enumerate(sched):
        if ks > waited:
            waited = min(ks + tgrp - 1, tp.issued - 1)
            tp.wait(waited)
        if stamps and g in stamps: a.stamp(stamps[g])
        if fills and g in fills:
            q += fills[g]()
        if g > fwaited:
            fwaited = min(g + fgrp - 1, fp.issued - 1)
            fp.wait(fwaited)
        emit_mfma(ks, f, fp.slot(g), tp.slot(ks))
        ensure(fp.issued); fp.issue()
        if aux_at and g in aux_at and aux:
            aux.pop(0)()
        elif g in tok_at and tp.issued < min(tp.n, ks + tp.NT - 1):
            tp.issue()
        elif g in tok_at and aux and not aux_at:
            aux.pop(0)()
        else:
            n = 0
            while q and n < (per_gap if isinstance(per_gap, int) else per_gap[0] if g < per_gap[1] else per_gap[2]):
                ins = q.pop(0)
                if ins.startswith("@G"):
                    a.e(ins[2:])
                    a.vm += sum(1 for l in ins[2:].split("\n") if l.startswith("buffer_"))
                    n += 1
                elif ins == "s_barrier":
                    a.bar()
                elif ins.startswith("buffer_"):
                    a.vmem(ins)
                else:
                    a.e(ins)
                if ins.startswith("v_mfma"):
                    break
                n += 1
    assert not aux and not q, (len(aux), len(q))

def csp_addr(a, v, tmp):
    a.e(f"v_and_b32 v{v}, 31, v{vL}\nv_lshlrev_b32 v{v}, 4, v{v}\nv_lshrrev_b32 v{tmp}, 5, v{vL}\nv_lshl_add_u32 v{v}, v{tmp}, 3, v{v}\ns_mov_b32 s59, 0x05040100")


def reduce_cs(a, vaddr, T, sdst, st_fn):
    for w in range(8):
        a.e(f"ds_read_b32 v{T+w}, v{vaddr} offset:{256*w}")
    a.e("s_waitcnt lgkmcnt(0)")
    for w in (4, 2, 1):
        for i in range(w):
            a.e(f"v_add_f32 v{T+i}, v{T+i}, v{T+i+w}")
    split_hilo(a, T, T + 8, T + 9, "one")
    a.e("s_mov_b32 exec_lo, -1\ns_mov_b32 exec_hi, 0")
    st_fn(f"buffer_store_dword v{T+8}, v{vL4}, s[8:11], s{sdst} offen")
    a.e("s_mov_b64 exec, -1")

def wait_l(a, n0, n1):
    L = a.label("wl")
    a.e(f"s_waitcnt vmcnt({n0})\ns_cmp_eq_u32 s{sL}, 0\ns_cbranch_scc1 {L}\ns_waitcnt vmcnt({n1})\n{L}:")

def layer0(a, fn):
    L = a.label("l0")
    a.e(f"s_cmp_lg_u32 s{sL}, 0\ns_cbranch_scc1 {L}")
    vm = a.vm
    fn()
    a.vm = vm
    a.e(f"{L}:")

vBG, vBT, vBS, BF, BO, BD = 188, 189, 190, 192, 208, 212
BGB = 96 * KB
def bg_issue(a, sVW, dma):
    n0 = len(a.lines)
    a.e(f"""
    s_load_dwordx2 s[4:5], s[0:1], {A_WO}
    s_load_dwordx4 s[80:83], s[0:1], {A_WG}
    s_load_dwordx2 s[6:7], s[0:1], {A_WD}
    s_waitcnt lgkmcnt(0)
    """)
    L_o = a.label("bo"); L_d = a.label("bd"); L_go = a.label("bgo"); L_od = a.label("bod")
    def wo_dst(ks, ct, dst, t):
        return f"""
        s_lshl_b32 s{dst}, s{ct}, 16
        s_and_b32 s{t}, s{ks}, 15
        s_lshl_b32 s{t}, s{t}, 12
        s_add_u32 s{dst}, s{dst}, s{t}
        s_lshr_b32 s{t}, s{ks}, 4
        s_lshl_b32 s{t}, s{t}, 11
        s_add_u32 s{dst}, s{dst}, s{t}
        s_add_u32 s{dst}, s{dst}, {WPO}
        """
    def wd_dst(ks, ct, dst, t):
        return f"""
        s_mul_i32 s{dst}, s{ct}, {172*KB}
        s_cmp_ge_u32 s{ks}, 43
        s_cselect_b32 s{t}, {2048 - 43*4096 + (1 << 32)}, 0
        s_add_u32 s{dst}, s{dst}, s{t}
        s_lshl_b32 s{t}, s{ks}, 12
        s_add_u32 s{dst}, s{dst}, s{t}
        s_add_u32 s{dst}, s{dst}, {WPD}
        """
    def gu_dst(v, dst, t):
        return f"""
        s_mul_i32 s{t}, s{v}, 43
        s_lshr_b32 s{t}, s{t}, 7
        s_mul_i32 s{dst}, s{t}, {192*KB - 3*2048}
        s_lshl_b32 s{t}, s{v}, 11
        s_add_u32 s{dst}, s{dst}, s{t}
        s_add_u32 s{dst}, s{dst}, s66
        """
    a.e(f"""
    s_mov_b32 s75, 0x00020000
    s_cmp_lt_u32 s2, 176
    s_cbranch_scc0 {L_o}
    s_cmp_ge_u32 s2, 88
    s_cselect_b32 s72, s82, s80
    s_cselect_b32 s73, s83, s81
    s_cselect_b32 s60, 88, 0
    s_cselect_b32 s66, 1024, 0
    s_cselect_b32 s98, {CSPU - CSPG}, 0
    s_mov_b32 s74, {512*2752}
    s_sub_u32 s60, s2, s60
    s_lshr_b32 s61, s60, 2           ; pair
    s_and_b32 s62, s60, 3            ; quarter
    s_lshl_b32 s63, s62, 3
    s_add_u32 s63, s63, s{sVW}        ; ks
    s_mul_i32 s64, s63, {16*2752}
    s_lshl_b32 s65, s61, 7
    s_add_u32 s64, s64, s65          ; src0
    s_mul_i32 s65, s63, {6*KB}
    s_add_u32 s66, s66, s65
    s_add_u32 s66, s66, {WPG}
    s_lshl_b32 s67, s61, 1           ; v0
    {gu_dst(67, 93, 68)}
    s_add_u32 s67, s67, 1
    {gu_dst(67, 94, 68)}
    s_lshl_b32 s68, s61, 10
    s_add_u32 s98, s98, s68
    s_lshl_b32 s68, s62, 7
    s_add_u32 s98, s98, s68
    s_add_u32 s98, s98, {CSPG}
    s_mov_b32 s95, s93
    s_mov_b32 s96, s94
    s_mov_b32 s97, 2
    s_mov_b32 s69, 2752
    s_branch {L_go}
{L_o}:
    s_sub_u32 s60, s2, 176
    s_lshl_b32 s60, s60, 4
    s_lshl_b32 s61, s{sVW}, 1
    s_add_u32 s60, s60, s61
    s_min_u32 s60, s60, 942
    s_mov_b32 s97, 4
    s_mov_b32 s69, 1024
    s_cmp_lt_u32 s60, 256
    s_cbranch_scc0 {L_d}
    s_mov_b32 s72, s4
    s_mov_b32 s73, s5
    s_mov_b32 s74, {512*1024}
    s_lshr_b32 s61, s60, 5           ; ct
    s_and_b32 s62, s60, 31           ; ks
    s_add_u32 s63, s62, 1
    {wo_dst(62, 61, 93, 68)}
    {wo_dst(63, 61, 95, 68)}
    s_branch {L_od}
{L_d}:
    s_mov_b32 s72, s6
    s_mov_b32 s73, s7
    s_mov_b32 s74, {1376*1024}
    s_sub_u32 s60, s60, 256
    s_mul_i32 s61, s60, 763
    s_lshr_b32 s61, s61, 16          ; ct
    s_mul_i32 s62, s61, 86
    s_sub_u32 s62, s60, s62          ; ks
    s_add_u32 s63, s62, 1
    {wd_dst(62, 61, 93, 68)}
    {wd_dst(63, 61, 95, 68)}
{L_od}:
    s_lshl_b32 s64, s62, 14
    s_lshl_b32 s65, s61, 7
    s_add_u32 s64, s64, s65
    s_add_u32 s94, s93, 1024
    s_add_u32 s96, s95, 1024
{L_go}:
    v_lshrrev_b32 v2, 3, v{vL}
    v_mul_lo_u32 v{vBG}, v2, s69
    v_and_b32 v2, 7, v{vL}
    v_lshl_add_u32 v{vBG}, v2, 4, v{vBG}
    s_lshl_b32 s99, s69, 3           ; 8 rows
    """)
    a.e("s_mov_b32 s89, s64")
    a.e(f"s_lshl_b32 s65, s{sVW}, 12\ns_add_u32 s65, s65, {BGB}")
    tr_addr(a, vBT, vL, 2, 7)
    a.e(f"v_add_u32 v{vBT}, s65, v{vBT}")
    L_q = a.label("bq"); L_e = a.label("be")
    a.e(f"""
    s_mov_b32 m0, s65
    s_add_u32 s66, s89, s99
    buffer_load_dwordx4 v{vBG}, s[72:75], s89 offen lds
    s_add_u32 m0, s65, {KB}
    s_add_u32 s64, s66, s99
    buffer_load_dwordx4 v{vBG}, s[72:75], s66 offen lds
    s_cmp_lt_u32 s2, 96
    s_cbranch_scc1 {L_q}
    s_cmp_eq_u32 s97, 2
    s_cselect_b32 s64, s89, s64
    s_add_u32 m0, s65, {2*KB}
    s_add_u32 s66, s64, s99
    buffer_load_dwordx4 v{vBG}, s[72:75], s64 offen lds
    s_add_u32 m0, s65, {3*KB}
    s_nop 0
    buffer_load_dwordx4 v{vBG}, s[72:75], s66 offen lds
    s_branch {L_e}
{L_q}:
    ; second task: wqkv pair p = id>>2, ks = 8*(id&3) + w
    s_load_dwordx2 s[72:73], s[0:1], {A_WQKV}
    s_mov_b32 s74, {512*3072}
    s_lshr_b32 s61, s2, 2
    s_and_b32 s62, s2, 3
    s_lshl_b32 s62, s62, 3
    s_add_u32 s62, s62, s{sVW}
    s_mul_i32 s63, s62, {16*3072}
    s_lshl_b32 s64, s61, 7
    s_add_u32 s63, s63, s64
    s_add_u32 s64, s63, {8*3072}
    s_and_b32 s66, s61, 7
    s_mul_i32 s95, s66, {192*KB}
    s_mul_i32 s66, s62, 3
    s_lshr_b32 s67, s61, 3
    s_add_u32 s66, s66, s67
    s_lshl_b32 s66, s66, 10
    s_add_u32 s95, s95, s66
    s_add_u32 s95, s95, {WPQ}
    s_add_u32 s96, s95, {96*KB}
    v_lshrrev_b32 v2, 3, v{vL}
    v_mul_u32_u24 v{vBG}, 3072, v2
    v_and_b32 v2, 7, v{vL}
    v_lshl_add_u32 v{vBG}, v2, 4, v{vBG}
    s_add_u32 m0, s65, {2*KB}
    s_waitcnt lgkmcnt(0)
    buffer_load_dwordx4 v{vBG}, s[72:75], s63 offen lds
    s_add_u32 m0, s65, {3*KB}
    s_nop 0
    buffer_load_dwordx4 v{vBG}, s[72:75], s64 offen lds
{L_e}:
    """)
    if not dma:
        keep = [l for l in a.lines[n0:] if " lds" not in l and "s_load" not in l and " m0," not in l]
        del a.lines[n0:]
        a.lines += keep

def bg_pack(a, sVW):
    L_b2 = a.label("b2"); L_bx = a.label("bx")
    for b in range(4):
        o = (b // 2) * 2 * KB + (b % 2) * 64
        a.e(f"ds_read_b64_tr_b16 v[{BF+4*b}:{BF+4*b+1}], v{vBT} offset:{o}\nds_read_b64_tr_b16 v[{BF+4*b+2}:{BF+4*b+3}], v{vBT} offset:{o+1024}")
    for i in range(4):
        a.e(f"v_mov_b32 v{BO+i}, 0x3f803f80")
    a.e(f"""
    s_lshl_b32 s60, s{sVW}, 8
    s_add_u32 s60, s60, {144*KB}
    v_add_u32 v{vBS}, s60, v{vL4}
    s_waitcnt lgkmcnt(0)
    buffer_store_dwordx4 {R(BF)}, v{vL16}, s[8:11], s93 offen sc1
    buffer_store_dwordx4 {R(BF+4)}, v{vL16}, s[8:11], s94 offen sc1
    buffer_store_dwordx4 {R(BF+8)}, v{vL16}, s[8:11], s95 offen sc1
    buffer_store_dwordx4 {R(BF+12)}, v{vL16}, s[8:11], s96 offen sc1
    s_cmp_lg_u32 s97, 2
    s_cbranch_scc1 {L_bx}
    """)
    a.e(mfma(BD, BO, BF, "0"))
    a.e(mfma(172, BO, BF + 4, "0"))
    a.e(f"""
    s_nop 15
    ds_write_b32 v{vBS}, v{BD}
    ds_write_b32 v{vBS}, v172 offset:2048
    s_waitcnt lgkmcnt(0)
{L_bx}:
    """)

def bg_reduce(a):
    L = a.label("br")
    a.e(f"s_cmp_lg_u32 s97, 2\ns_cbranch_scc1 {L}")
    for sub in range(2):
        a.e(f"v_add_u32 v{vBS}, {144*KB + 2048*sub}, v{vL4}\ns_add_u32 s67, s98, {512*sub}")
        reduce_cs(a, vBS, BD, 67, lambda st: a.e(st + " sc1"))
    a.e(f"s_waitcnt vmcnt(0)\n{L}:")

def bg_signal(a):
    def bgsig():
        bg_reduce(a)
        a.e(f"""
        s_lshl_b32 s61, s2, 2
        s_add_u32 s61, s61, {BGF}
        v_mov_b32 v2, 1
        s_mov_b64 exec, 1
        buffer_store_dword v2, v{vZ}, s[8:11], s61 offen sc1
        s_mov_b64 exec, -1
        """)
    arrive(a, 4, bgsig, second=True)

def qkv_sig(a):
    a.e(f"""
    s_lshl_b32 s61, s{sL}, 11
    s_lshr_b32 s62, s{sJ}, 1
    s_lshl_b32 s62, s62, 7
    s_add_u32 s61, s61, s62
    s_lshl_b32 s62, s{sG}, 1
    s_and_b32 s63, s{sJ}, 1
    s_add_u32 s62, s62, s63
    s_lshl_b32 s62, s62, 2
    s_add_u32 s61, s61, s62
    s_add_u32 s61, s61, {QFL}
    v_mov_b32 v2, 1
    s_mov_b64 exec, 1
    buffer_store_dword v2, v{vZ}, s[8:11], s61 offen sc1
    s_mov_b64 exec, -1
    """)

def stage_qkv0(a, L_roles, warm, ticket, roles):
    NS, SB = 5, 28 * KB
    ST_L, CS_L = XCH + 1024, XCH + 2048
    vXA = 8
    vTN = 20
    def common_addr(natural):
        a.e(f"""
        v_and_b32 v24, 31, v{vL}
        v_lshrrev_b32 v25, 5, v{vL}
        v_bfe_u32 v26, v{vL}, 1, 3
        v_xor_b32 v25, v25, v26
        v_lshlrev_b32 v25, 4, v25
        v_lshl_add_u32 v25, v24, 7, v25
        s_lshl_b32 s60, s{sLW}, 2
        s_add_u32 s60, s60, {12*KB}
        v_add_u32 v25, s60, v25
        """)
        for kk in range(4):
            a.e(f"v_xor_b32 v{vXA+3*kk}, {32*kk}, v25\nv_add_u32 v{vXA+3*kk+1}, 0x10000, v{vXA+3*kk}\nv_add_u32 v{vXA+3*kk+2}, 0x20000, v{vXA+3*kk}")
        tr_addr(a, vTN, vL, 2)
        if natural:
            a.e(f"v_and_b32 v2, 32, v{vL}\nv_lshl_add_u32 v{vTN}, v2, 3, v{vTN}")
        else:
            a.e(f"s_mul_i32 s60, s{sLW}, 3\nv_add_u32 v{vTN}, s60, v{vTN}")
        a.e(f"v_add_u32 v{vTN+1}, 0x10000, v{vTN}\nv_add_u32 v{vTN+2}, 0x20000, v{vTN}")
    def xrd(dst, c, kk):
        va, off = lds_win((c % NS) * SB, (vXA + 3 * kk, vXA + 3 * kk + 1, vXA + 3 * kk + 2))
        return f"ds_read_b128 {R(dst)}, v{va} offset:{off}"
    def wrd(dst, off, second):
        va, o = lds_win(off, (vTN, vTN + 1, vTN + 2))
        return f"ds_read_b64_tr_b16 v[{dst}:{dst+1}], v{va} offset:{o}\nds_read_b64_tr_b16 v[{dst+2}:{dst+3}], v{va} offset:{o+second}"
    def verdict_read():
        a.e(f"v_mov_b32 v2, {XCH}\nds_read_b64 v[30:31], v2")
    def verdict_branch():
        Lr = a.label("valid")
        a.e(f"""
        v_readfirstlane_b32 s60, v30
        s_andn2_b32 s60, s60, s{sREDO}
        s_mov_b32 s{sREDO}, 3
        s_cmp_eq_u32 s60, 0
        s_cbranch_scc1 {Lr}
        v_readfirstlane_b32 s61, v31
        s_waitcnt vmcnt(0) lgkmcnt(0)
        s_nop 15
        s_barrier
        s_mov_b32 s{sJ}, s61
        s_cmp_eq_u32 s60, 1
        s_cbranch_scc1 {L_roles}
        s_and_b32 s{sG}, s2, 7
        s_lshr_b32 s{sJ}, s2, 3
        s_mov_b32 s{sMODE}, 1
        s_branch {L_roles}
{Lr}:
        """)
    def comp():
        ACC, FR, TK, CSO, TMP, TKO, RO, ON, RB = 32, 80, 104, 116, 128, 140, 144, 148, 152
        DW, DT = 6, 3
        roles()
        a.e(f"""
        v_lshrrev_b32 v2, 3, v{vL}
        v_and_b32 v8, 7, v{vL}
        v_lshlrev_b32 v8, 4, v8
        v_lshl_add_u32 v8, v2, 10, v8
        s_lshl_b32 s62, s{sG}, 18
        s_lshl_b32 s63, s{sJ}, 13
        s_add_u32 s62, s62, s63
        s_lshl_b32 s63, s{sW}, 8
        s_add_u32 s62, s62, s63
        buffer_load_dwordx4 v[32:35], v8, s[56:59], s62 offen
        buffer_load_dwordx4 v[36:39], v8, s[56:59], s62 offen offset:128
        """)
        warm()
        Lx = a.label("xw")
        a.e(f"""
        s_lshl_b32 s60, s{sG}, 3
        s_lshr_b32 s61, s{sJ}, 2
        s_add_u32 s60, s60, s61
        s_lshl_b32 s60, s60, 12
        s_add_u32 s60, s60, s{sW10}
        s_and_b32 s61, s{sJ}, 3
        s_lshl_b32 s61, s61, 7
        s_add_u32 s60, s60, s61
        s_add_u32 s67, s60, {STA}
        v_lshrrev_b32 v9, 3, v{vL}
        v_lshlrev_b32 v9, 4, v9
        v_bfe_u32 v10, v{vL}, 2, 1
        v_lshl_add_u32 v9, v10, 2, v9
        v_bfe_u32 v10, v{vL}, 1, 1
        v_lshl_add_u32 v9, v10, 3, v9
        v_cmp_eq_u32 s[64:65], 1, v10
        v_and_b32 v10, 1, v{vL}
        v_lshl_add_u32 v9, v10, 9, v9
        v_cmp_eq_u32 s[68:69], 1, v10
        s_waitcnt vmcnt(1)
        s_or_b32 s60, s{sW}, s{sREDO}
        s_cmp_eq_u32 s60, 0
        s_cbranch_scc1 {Lx}
        s_waitcnt vmcnt(0)
{Lx}:
        """)
        for h in range(2):
            S_, Q_ = 40 + 2 * h, 41 + 2 * h
            a.e(f"v_mov_b32 v{S_}, 0\nv_mov_b32 v{Q_}, 0")
            for r in range(4):
                x = 32 + 4 * h + r
                a.e(f"""
                v_lshlrev_b32 v44, 16, v{x}
                v_and_b32 v45, 0xffff0000, v{x}
                v_add_f32 v{S_}, v{S_}, v44
                v_fmac_f32 v{Q_}, v44, v44
                v_add_f32 v{S_}, v{S_}, v45
                v_fmac_f32 v{Q_}, v45, v45
                """)
        a.e("s_nop 1")
        for perm in ("[1,0,3,2]", "[2,3,0,1]"):
            for r in range(40, 44):
                a.e(f"v_add_f32_dpp v{r}, v{r}, v{r} quad_perm:{perm} row_mask:0xf bank_mask:0xf")
            a.e("s_nop 0")
        a.e(f"""
        v_cndmask_b32 v40, v40, v41, s[68:69]
        v_cndmask_b32 v42, v42, v43, s[68:69]
        v_cndmask_b32 v40, v40, v42, s[64:65]
        buffer_store_dword v40, v9, s[8:11], s67 offen sc1
        """)
        if OPT["coop"] != 'x':
            c0 = int(OPT["coop"])
            n = (8 - c0) * 6
            a.e(f"s_mul_i32 s62, s{sJ}, 6144")
            for i in range((n + 3) // 4):
                a.e(f"""
                s_add_u32 s60, s{sW}, {4*i}
                s_min_u32 s60, s60, {n-1}
                s_mul_i32 s61, s60, 43
                s_lshr_b32 s61, s61, 8
                s_mul_i32 s63, s61, 6
                s_sub_u32 s60, s60, s63
                s_add_u32 s61, s61, s{sG}
                s_add_u32 s61, s61, {c0}
                s_and_b32 s61, s61, 7
                s_mul_i32 s61, s61, {64*3072}
                s_lshl_b32 s60, s60, 10
                s_add_u32 s60, s60, s61
                s_add_u32 s60, s60, s62
                buffer_load_dwordx4 v[204:207], v{vL16}, s[80:83], s60 offen
                """)
        if OPT["tlb"]:
            Lt = a.label("tlb")
            a.e(f"""
            s_xor_b32 s60, s{sW}, 1
            s_or_b32 s60, s60, s{sREDO}
            s_cmp_lg_u32 s60, 0
            s_cbranch_scc1 {Lt}
            v_lshlrev_b32 v9, 21, v{vL}
            buffer_load_dword v250, v9, s[8:11], 0 offen
            s_mov_b64 exec, 1
            global_load_dword v250, v{vZ}, s[40:41]
            global_load_dword v250, v{vZ}, s[44:45]
            global_load_dword v250, v{vZ}, s[46:47]
            global_load_dword v250, v{vZ}, s[48:49]
            global_load_dword v250, v{vZ}, s[50:51]
            s_mov_b64 exec, -1
{Lt}:
            """)
        common_addr(True)
        a.e(f"""
        s_lshl_b32 s4, s{sG}, 3
        s_and_b32 s5, s{sJ}, 1
        s_lshl_b32 s5, s5, 2
        s_add_u32 s4, s4, s5
        s_add_u32 s4, s4, s{sW}          ; tb
        s_lshr_b32 s5, s{sJ}, 1          ; ct
        s_lshl_b32 s68, s5, 9
        s_mul_i32 s69, s{sG}, {CSPQ_G}
        s_add_u32 s68, s68, s69
        s_add_u32 s68, s68, {CSPQ - CS_L}
        s_lshl_b32 s32, s5, 11
        s_mul_i32 s33, s4, {86*KB}
        s_add_u32 s32, s32, s33
        s_add_u32 s32, s32, s{sQB}
        s_lshl_b32 s34, s5, 18
        s_lshl_b32 s35, s4, 11
        s_add_u32 s34, s34, s35
        s_add_u32 s34, s34, {KV}
        s_add_u32 s35, s34, 0x20000
        v_bfe_u32 v{TMP+8}, v{vL}, 4, 1
        v_lshlrev_b32 v{TMP+8}, 17, v{TMP+8}
        v_lshrrev_b32 v{TMP+6}, 5, v{vL}
        v_lshl_add_u32 v{TMP+8}, v{TMP+6}, 8, v{TMP+8}
        v_and_b32 v{TMP+6}, 15, v{vL}
        v_lshl_add_u32 v{TMP+8}, v{TMP+6}, 4, v{TMP+8}
        v_and_b32 v{TMP+9}, 31, v{vL}
        v_lshlrev_b32 v{TMP+9}, 4, v{TMP+9}
        v_lshrrev_b32 v{TMP+6}, 5, v{vL}
        v_lshl_add_u32 v{TMP+9}, v{TMP+6}, 3, v{TMP+9}
        v_add_u32 v{TMP+9}, {CS_L}, v{TMP+9}
        s_lshl_b32 s7, s4, 12
        s_add_u32 s7, s7, {STA}
        s_mov_b32 s6, 0x05040100
        """)
        for sub in range(3):
            a.e(f"v_mov_b32 v{CSO+4*sub+3}, 0")
        for i in range(4):
            a.e(f"v_mov_b32 v{ON+i}, 0x3f803f80")
        QD = int(OPT['q0d'])
        items = []
        for ks in range(32):
            items += [("t", ks, 0), ("w", ks, 1), ("w", ks, 2)] + ([("w", ks, 0)] if ks < QD else [])
        NM = len(items)
        for ks in range(QD, 32):
            items += [("t", ks, 0), ("w", ks, 0)]
        tok_of, lastuse = {}, {}
        for i, it in enumerate(items):
            if it[0] == "t": cur = i
            tok_of[i] = cur; lastuse[cur] = i; lastuse[i] = max(lastuse.get(i, i), i)
        first = {min(i for i, it in enumerate(items) if it[1] // 4 == c): c for c in range(8)}
        cum = []
        st = dict(i=0, ops=0, nw=0, nt=0, done=-1)
        slot, holder = {}, {}
        def issue():
            i = st["i"]
            if i >= len(items):
                return False
            k, ks, f = items[i]
            sl = TK + 4 * (st["nt"] % DT) if k == "t" else FR + 4 * (st["nw"] % DW)
            if sl in holder and lastuse[holder[sl]] > st["done"]:
                return False
            if i in first:
                c = first[i]
                if c == 3:
                    a.e("s_waitcnt vmcnt(0)")
                    ticket()
                a.bar()
                if c == 0:
                    a.stamp(1)
                elif OPT["qstamp"]:
                    a.stamp(17 + c)
                if c == 4:
                    verdict_read()
                if c == 5:
                    verdict_branch()
                if c == 6:
                    for q in range(4):
                        a.e(f"buffer_load_dwordx4 {R(RB+4*q)}, v{vL16}, s[8:11], s7 offen offset:{1024*q} sc1")
            slot[i] = sl; holder[sl] = i
            if k == "t":
                st["nt"] += 1
                a.e(xrd(sl, ks // 4, ks % 4)); st["ops"] += 1
            else:
                st["nw"] += 1
                a.e(wrd(sl, ((ks // 4) % NS) * SB + ((ks % 4) * 3 + f) * KB, 256)); st["ops"] += 2
            cum.append(st["ops"]); st["i"] += 1
            return True
        LA = int(OPT['q0la'])
        for _ in range(LA):
            issue()
        vMean, vRstd = TMP, TMP + 2
        def fill_fn():
            a.e("s_waitcnt vmcnt(0)")
            stats_finish(a, RB, vMean, vRstd, TMP + 1)
            split_hilo(a, vMean, TKO, TMP + 1, "tok")
            a.e(f"v_cmp_gt_u32 vcc, 32, v{vL}\nv_mov_b32 v{vRstd+1}, v{vRstd}\nv_mul_f32 v{TMP+4}, {f32(0.25*1.4426950408889634)}, v{vRstd}\nv_cndmask_b32 v{TMP+6}, 0, v{vRstd}, vcc")
            split_hilo(a, TMP + 6, RO, TMP + 1, "hl")
            a.e(f"v_mov_b32 v{TMP+5}, v{TMP+4}\ns_nop 0")
            a.e(mfma(RB, RO, ON, "0"))
        def cst():
            for sub in range(3):
                a.e(f"buffer_store_dwordx2 v[{CSO+4*sub}:{CSO+4*sub+1}], v{TMP+9}, s[8:11], s68 offen sc1\ns_add_u32 s68, s68, 8192")
        def corr():
            a.bar()
            for sub in range(3):
                a.e(f"ds_read_b64 v[{CSO+4*sub}:{CSO+4*sub+1}], v{TMP+9} offset:{512*sub}")
            a.e("s_waitcnt lgkmcnt(0)")
            for sub in range(3):
                a.e(f"v_perm_b32 v{CSO+4*sub+2}, v{CSO+4*sub+1}, v{CSO+4*sub}, s6")
            a.e("s_nop 1")
            a.e(mfma(ACC + 16, CSO + 4, TKO))
            a.e(mfma(ACC + 32, TKO, CSO + 8))
            a.e(mfma(ACC, CSO, TKO))
            only_wave0(a, cst, 3)
        def kv_fn():
            for sub in (1, 2):
                p = ACC + 16 * sub
                for r in range(16):
                    a.e(f"v_mul_f32 v{p+r}, v{p+r}, v{vRstd if sub == 1 else RB + r}")
                for r in range(8):
                    a.e(f"v_cvt_pk_bf16_f32 v{p+r}, v{p+2*r}, v{p+2*r+1}")
                if sub == 1:
                    a.e(f"buffer_store_dwordx4 {R(p)}, v{vL16}, s[8:11], s34 offen sc1\nbuffer_store_dwordx4 {R(p+4)}, v{vL16}, s[8:11], s35 offen sc1")
                else:
                    a.e(f"buffer_store_dwordx4 {R(p)}, v{TMP+8}, s[8:11], s34 offen offset:1024 sc1\nbuffer_store_dwordx4 {R(p+4)}, v{TMP+8}, s[8:11], s34 offen offset:1536 sc1")
        fq = a.capture(fill_fn)
        kq = a.capture(kv_fn)
        f0 = min(i for i, it in enumerate(items) if it[1] == 26)
        for i, (k, ks, f) in enumerate(items):
            if i == NM:
                assert not fq
                a.stamp(2)
                corr()
            if k == "t":
                continue
            a.e(f"s_waitcnt lgkmcnt({min(15, st['ops'] - cum[i])})")
            C = "0" if ks == 0 else None
            w, t = slot[i], slot[tok_of[i]]
            a.e(mfma(ACC + 16 * f, w, t, C) if f < 2 else mfma(ACC + 16 * f, t, w, C))
            st["done"] = i
            while st["i"] <= i + LA and issue():
                pass
            if f0 <= i < NM:
                for _ in range(5):
                    if fq: a.e(fq.pop(0))
            if i >= NM + 5:
                for _ in range(int(OPT['q0g'])):
                    if kq: a.e(kq.pop(0))
        while kq:
            a.e(kq.pop(0))
        a.e("s_nop 11")
        p = ACC
        for r in range(8):
            a.e(f"v_pk_mul_f32 v[{p+2*r}:{p+2*r+1}], v[{p+2*r}:{p+2*r+1}], v[{TMP+4}:{TMP+5}]")
        for r in range(8):
            a.e(f"v_cvt_pk_bf16_f32 v{p+r}, v{p+2*r}, v{p+2*r+1}")
        a.e(f"buffer_store_dwordx4 {R(p)}, v{vL16}, s[8:11], s32 offen sc1\nbuffer_store_dwordx4 {R(p+4)}, v{vL16}, s[8:11], s32 offen offset:1024 sc1")
        signal_wave(a, 1, 3)
    def load():
        vWQ, vX0, vX1, WF, XF_, CSA, ON, vS, vQ, T = 24, 25, 26, 32, 44, 64, 60, 112, 113, 114
        a.e(f"""
        v_lshrrev_b32 v2, 2, v{vL}
        v_mul_u32_u24 v{vWQ}, 3072, v2
        v_and_b32 v2, 3, v{vL}
        v_lshl_add_u32 v{vWQ}, v2, 4, v{vWQ}
        v_and_b32 v2, 7, v{vL}
        v_lshrrev_b32 v27, 4, v{vL}
        v_xor_b32 v2, v2, v27
        v_lshlrev_b32 v2, 4, v2
        v_lshrrev_b32 v27, 3, v{vL}
        v_lshl_add_u32 v{vX0}, v27, 10, v2
        v_xor_b32 v{vX1}, 64, v{vX0}
        s_lshl_b32 s4, s{sG}, 3
        s_and_b32 s7, s{sJ}, 1
        s_lshl_b32 s5, s7, 2
        s_add_u32 s4, s4, s5
        s_lshl_b32 s4, s4, 15
        s_lshl_b32 s5, s{sLW}, 5
        s_add_u32 s4, s4, s5             ; x byte offset of token block
        s_lshr_b32 s5, s{sJ}, 1
        s_lshl_b32 s5, s5, 6
        s_mul_i32 s6, s{sLW}, 48
        s_add_u32 s5, s5, s6
        s_mul_i32 s32, s{sLW}, 3         ; lw*3K
        s_lshl_b32 s33, s{sLW}, 2        ; lw*4K
        """)
        last = {}
        def issue(c):
            B = (c % NS) * SB
            a.e(f"""
            s_add_u32 s61, s{sG}, {c}
            s_and_b32 s61, s61, 7
            s_mul_i32 s60, s61, {64*3072}
            s_add_u32 s60, s60, s5
            s_add_u32 m0, s32, {B}
            s_lshl_b32 s61, s61, 7
            s_add_u32 s61, s61, s4
            """)
            for f in (1, 2, 0):
                a.vmem(f"buffer_load_dwordx4 v{vWQ}, s[80:83], s60 offen offset:{f*KB} lds")
            a.e(f"s_add_u32 m0, s33, {B + 12*KB}")
            for i in range(4):
                a.e(f"s_add_u32 s60, s61, {i*7*KB}")
                last[c] = a.vmem(f"buffer_load_dwordx4 v{vX1 if i & 1 else vX0}, s[56:59], s60 offen offset:{i*KB} lds")
        a.vm = 0
        UP = int(OPT['q0up'])
        for c in range(UP):
            issue(c)
        roles()
        a.e(f"v_mov_b32 v28, v24\nv_mov_b32 v29, v25\nv_mov_b32 v30, v26")
        common_addr(False)
        a.e(f"v_mov_b32 v24, v28\nv_mov_b32 v25, v29\nv_mov_b32 v26, v30")
        for i in range(4):
            a.e(f"v_mov_b32 v{ON+i}, 0x3f803f80")
        EARLY = OPT['q0e'] != 'x'
        if EARLY:
            a.e(f"s_waitcnt vmcnt({OPT['q0e']})")
            for c in range(UP, 5):
                issue(c)
        def sig0():
            Ls = a.label("tk"); Lp = a.label("tkp"); Ld = a.label("tkd"); Ln = a.label("tkn")
            a.e(f"""
            s_cmp_lg_u32 s{sREDO}, 0
            s_cbranch_scc1 {Ls}
            s_mov_b32 s60, 0
            s_mov_b64 exec, 0xff
            v_cmp_ne_u32 vcc, 0x2000, v123
            v_cmp_ne_u32 s[62:63], -1, v122
            s_nop 1
            s_or_b64 s[62:63], s[62:63], vcc
            s_cmp_eq_u64 s[62:63], 0
            s_cbranch_scc1 {Ld if str(OPT['force_mode']) != '0' else Ld + 'f'}
{Lp}:
            s_add_u32 s60, s60, 1
            v_bfe_u32 v121, v123, 8, 16
            s_nop 0
            v_readlane_b32 s62, v121, 0
            """)
            for i in range(1, 8):
                a.e(f"v_readlane_b32 s63, v121, {i}\ns_add_u32 s62, s62, s63")
            a.e(f"""
            s_cmp_gt_u32 s60, 0x4000
            s_cbranch_scc1 {Ld}
            s_cmp_ge_u32 s62, 256
            s_cbranch_scc1 {Ld}
            buffer_load_dwordx2 v[122:123], v120, s[84:87], 0 offen sc1
            s_waitcnt vmcnt(0)
            s_branch {Lp}
{Ld}:
            v_and_b32 v2, 0xffffff00, v123
            v_cmp_ne_u32 vcc, 0x2000, v2
            v_cmp_ne_u32 s[62:63], -1, v122
            v_cmp_ne_u32 s[64:65], v2, v123
            s_nop 2
            s_or_b64 s[62:63], s[62:63], s[64:65]
            s_cmp_lg_u64 s[62:63], 0
            s_cselect_b32 s60, 1, {OPT['force_mode']}
            s_cmp_lg_u64 vcc, 0
            s_cselect_b32 s60, 2, s60
{Ld}f:
            s_mov_b64 exec, -1
            v_mov_b32 v2, s60
            v_mov_b32 v120, {XCH}
            ds_write_b32 v120, v2
            s_waitcnt lgkmcnt(0)
            s_cmp_lg_u32 s60, 0
            s_cbranch_scc1 {Ln}
{Ls}:
            """)
            signal_group(a, 0)
            a.e(f"{Ln}:")
        for k in range(8):
            a.wait_vm(last[k])
            if k == 6:
                L = a.label("w4")
                a.e(f"s_cmp_lg_u32 s{sW}, 4\ns_cbranch_scc1 {L}\ns_mov_b32 s62, 1")
                a.wait_vm(pre2)
                a.e(f"s_mov_b32 exec_lo, s63\ns_mov_b32 exec_hi, 0\nv_min3_u32 v124, v124, v125, v126\nv_min_u32 v124, v124, v127\nv_cmp_gt_u32 vcc, 1, v124\ns_mov_b64 exec, -1\ns_nop 0\ns_cbranch_vccz {L}")
                poll(a, sGFL, "s63", 62)
                a.e(f"{L}:")
            a.bar()
            if k == 4:
                verdict_read()
            if k == 5:
                verdict_branch()
                a.e(f"s_lshl_b32 s63, s7, 4\ns_lshl_b32 s63, 0xffff, s63\ns_mov_b32 exec_lo, s63\ns_mov_b32 exec_hi, 0")
                pre2 = a.vmem(f"buffer_load_dwordx4 {R(124)}, v{vL32}, s[8:11], s{sGFL} offen sc1")
                a.e("s_mov_b64 exec, -1")
            if k == 2:
                a.e(f"v_lshlrev_b32 v120, 5, v{vL}\ns_mov_b64 exec, 0xff")
                pre = a.vmem("buffer_load_dwordx2 v[122:123], v120, s[84:87], 0 offen sc1")
                a.e("s_mov_b64 exec, -1")
            for c in ({2: [5], 3: [6], 4: [7]} if EARLY else {0: [c_ for c_ in (1, 2, 3) if c_ >= UP], 1: [4], 2: [5], 3: [6], 4: [7]}).get(k, []):
                issue(c)
            if k == 5 and OPT["pwkv0"]:
                prewrite_kv(a, 0, 64, q=True)
            if k == 3:
                L = a.label("w4s")
                a.e(f"s_cmp_lg_u32 s{sW}, 4\ns_cbranch_scc1 {L}")
                vm = a.vm
                a.wait_vm(pre)
                sig0()
                a.vm = vm
                a.e(f"{L}:")
            B = (k % NS) * SB
            for f in range(3):
                a.e(wrd(WF + 4 * f, B + f * KB, 512))
            a.e("s_waitcnt lgkmcnt(0)")
            for f in range(3):
                a.e(mfma(CSA + 16 * f, ON, WF + 4 * f, "0" if k == 0 else None))
        a.e(f"""
        s_lshr_b32 s60, s{sLW}, 8
        v_and_b32 v{T+3}, 31, v{vL}
        v_lshl_add_u32 v{T+3}, v{T+3}, 4, s60
        v_add_u32 v{T+4}, {CS_L}, v{T+3}
        s_nop 7
        s_nop 7
        """)
        for f in range(3):
            split_hilo(a, CSA + 16 * f, T + 5 + f, T, "one")
        a.e("s_mov_b32 exec_lo, -1\ns_mov_b32 exec_hi, 0")
        for f in range(3):
            a.e(f"ds_write_b32 v{T+4}, v{T+5+f} offset:{512*f}")
        a.e("s_mov_b64 exec, -1\ns_waitcnt lgkmcnt(0)")
        a.bar()
        a.e(f"s_add_u32 s{sCNT}, s{sCNT}, 4")
    (by_role_lf if OPT['lf'] else by_role)(a, comp, load)

def stage_qkv(a, Q):
    ACC, FR, ST, CSO, TMP, TKO, RO, ON, TOK, NT, D = 8, 56, 72, 88, 100, 110, 114, 118, 122, 32, 4
    RB = ST
    def comp():
        a.e(f"""
        s_lshl_b32 s32, s{sG}, 3
        s_and_b32 s33, s{sJ}, 1
        s_lshl_b32 s33, s33, 2
        s_add_u32 s32, s32, s33
        s_add_u32 s32, s32, s{sW}
        s_lshr_b32 s33, s{sJ}, 1
        s_lshl_b32 s34, s32, 15
        s_add_u32 s34, s34, s{sXN}
        s_lshl_b32 s35, s32, 12
        s_add_u32 s35, s35, s{sSN}
        s_lshl_b32 s36, s33, 9
        s_mul_i32 s37, s{sG}, {CSPQ_G}
        s_add_u32 s36, s36, s37
        s_add_u32 s36, s36, {CSPQ}
        s_add_u32 s37, s36, 8192
        s_add_u32 s42, s36, 16384
        s_lshl_b32 s38, s33, 11
        s_mul_i32 s39, s32, {86*KB}
        s_add_u32 s38, s38, s39
        s_add_u32 s38, s38, s{sQB}
        s_lshl_b32 s40, s33, 18
        s_lshl_b32 s41, s32, 11
        s_add_u32 s40, s40, s41
        s_add_u32 s40, s40, s{sLAY}
        s_add_u32 s40, s40, {KV}
        s_add_u32 s41, s40, 0x20000
        v_bfe_u32 v{TMP+8}, v{vL}, 4, 1
        v_lshlrev_b32 v{TMP+8}, 17, v{TMP+8}
        v_lshrrev_b32 v{TMP+6}, 5, v{vL}
        v_lshl_add_u32 v{TMP+8}, v{TMP+6}, 8, v{TMP+8}
        v_and_b32 v{TMP+6}, 15, v{vL}
        v_lshl_add_u32 v{TMP+8}, v{TMP+6}, 4, v{TMP+8}
        """)
        csp_addr(a, TMP + 9, TMP + 1)
        for sub in range(3):
            a.e(f"v_mov_b32 v{CSO+4*sub+3}, 0")
        for i in range(4):
            a.e(f"v_mov_b32 v{ON+i}, 0x3f803f80")
        a.bar()
        a.stamp(1)
        tp = TokPipe(a, TOK, NT, 32, 34)
        last = [None]
        def ld(s_):
            return lambda: last.__setitem__(0, a.vmem(s_))
        aux = [ld(f"buffer_load_dwordx4 {R(ST+4*q)}, v{vL16}, s[8:11], s35 offen offset:{1024*q} sc1") for q in range(4)]
        aux += [ld(f"buffer_load_dwordx2 v[{CSO+4*i}:{CSO+4*i+1}], v{TMP+9}, s[8:11], s{sr} offen sc1") for i, sr in enumerate((36, 37, 42))]
        vMean, vRstd = TMP, TMP + 2
        def fill_fn():
            a.wait_vm(last[0])
            stats_finish(a, ST, vMean, vRstd, TMP + 1)
            split_hilo(a, vMean, TKO, TMP + 1, "tok")
            for sub in range(3):
                a.e(f"v_perm_b32 v{CSO+4*sub+2}, v{CSO+4*sub+1}, v{CSO+4*sub}, s59")
            a.e(f"v_cmp_gt_u32 vcc, 32, v{vL}\nv_mov_b32 v{vRstd+1}, v{vRstd}\nv_mul_f32 v{TMP+4}, {f32(0.25*1.4426950408889634)}, v{vRstd}\nv_cndmask_b32 v{TMP+6}, 0, v{vRstd}, vcc")
            split_hilo(a, TMP + 6, RO, TMP + 1, "hl")
            a.e(f"v_mov_b32 v{TMP+5}, v{TMP+4}\ns_nop 0")
            a.e(mfma(ACC, CSO, TKO, "0"))
            a.e(mfma(ACC + 16, CSO + 4, TKO))
            a.e(mfma(ACC + 32, TKO, CSO + 8))
            a.e(mfma(RB, RO, ON, "0"))
        def kv_fn():
            for sub in (1, 2):
                for r in range(16):
                    x = ACC + 16 * sub + r
                    a.e(f"v_mul_f32 v{x}, v{x}, v{vRstd if sub == 1 else RB + r}")
                p = ACC + 16 * sub
                for r in range(8):
                    a.e(f"v_cvt_pk_bf16_f32 v{p+r}, v{p+2*r}, v{p+2*r+1}")
                if sub == 1:
                    a.e(f"buffer_store_dwordx4 {R(p)}, v{vL16}, s[8:11], s40 offen sc1")
                    a.e(f"buffer_store_dwordx4 {R(p+4)}, v{vL16}, s[8:11], s41 offen sc1")
                else:
                    a.e(f"buffer_store_dwordx4 {R(p)}, v{TMP+8}, s[8:11], s40 offen offset:1024 sc1")
                    a.e(f"buffer_store_dwordx4 {R(p+4)}, v{TMP+8}, s[8:11], s40 offen offset:1536 sc1")
        sched = [(ks, f) for ks in range(32) for f in (1, 2)] + [(ks, 0) for ks in range(32)]
        frags = [lds_win(Q[ks // 4].lds * KB + ((ks % 4) * 3 + f) * KB) for ks, f in sched]
        fp = FragPipe(a, FR, D, frags)
        def em(ks, f, w, t):
            C = "0" if ks == 0 and f != 0 else None
            a.e(mfma(ACC + 16 * f, w, t, C) if f < 2 else mfma(ACC + 16 * f, t, w, C))
        gemm_loop(a, fp, tp, sched, {32}, em, tok0=int(OPT['qtok0']), aux=aux, **{'A': {}, 'B': dict(aux_late=True, aux_at=set(range(1, 15, 2)))}[OPT['qv']], tok_at=set(range(0, 64, 2)),
                  fills={25: lambda: a.capture(fill_fn), 67: lambda: a.capture(kv_fn)}, per_gap=int(OPT['qpg']))
        a.stamp(2)
        a.e("s_nop 11")
        p = ACC
        for r in range(8):
            a.e(f"v_pk_mul_f32 v[{p+2*r}:{p+2*r+1}], v[{p+2*r}:{p+2*r+1}], v[{TMP+4}:{TMP+5}]")
        for r in range(8):
            a.e(f"v_cvt_pk_bf16_f32 v{p+r}, v{p+2*r}, v{p+2*r+1}")
        stores(a, [f"buffer_store_dwordx4 {R(p)}, v{vL16}, s[8:11], s38 offen",
                   f"buffer_store_dwordx4 {R(p+4)}, v{vL16}, s[8:11], s38 offen offset:1024"])
        signal_wave(a, 1, 3)
    def load():
        a.vm = 0
        for ch in Q:
            a.vm += ch.nblk // 4
            ch.last = a.vm - 1
        only_wave0(a, lambda: dep_half_poll(a, sJ, 0), int(OPT['pw']))
        loader_stage(a, [Q[0:4], Q[4:8]], {})
        a.e(f"s_add_u32 s{sCNT}, s{sCNT}, 4")
    by_role(a, comp, load)

def fast_only(a, fn):
    L = a.label("fo")
    a.e(f"s_cmp_lg_u32 s{sMODE}, 0\ns_cbranch_scc1 {L}")
    vm = a.vm
    fn()
    a.vm = vm
    a.e(f"{L}:")

def warm_attn(a):
    a.e(f"""
    v_lshrrev_b32 v167, 3, v{vL}
    v_lshlrev_b32 v167, 15, v167
    v_and_b32 v166, 7, v{vL}
    v_lshl_add_u32 v167, v166, 7, v167
    s_lshl_b32 s60, s{sG}, 18
    s_lshl_b32 s61, s{sJ}, 10
    s_add_u32 s61, s61, s60
    s_add_u32 s61, s61, {OF}
    v_lshrrev_b32 v166, 5, v{vL}
    v_and_b32 v165, 31, v{vL}
    v_lshlrev_b32 v165, 7, v165
    v_lshl_add_u32 v165, v166, 15, v165
    s_and_b32 s62, s{sJ}, 3
    s_lshl_b32 s63, s62, 16
    s_add_u32 s63, s63, s60
    s_lshr_b32 s64, s{sJ}, 2
    s_lshl_b32 s65, s64, 12
    s_add_u32 s63, s63, s65
    s_add_u32 s63, s63, {XB}
    v_and_b32 v166, 7, v{vL}
    v_lshlrev_b32 v166, 7, v166
    v_bfe_u32 v2, v{vL}, 3, 1
    v_lshl_add_u32 v166, v2, 12, v166
    s_lshl_b32 s60, s{sG}, 15
    s_lshl_b32 s62, s62, 13
    s_add_u32 s60, s60, s62
    s_lshr_b32 s64, s64, 1
    s_lshl_b32 s64, s64, 10
    s_add_u32 s60, s60, s64
    s_add_u32 s60, s60, {STB}
    s_cmp_eq_u32 s{sW}, 5
    s_cselect_b32 s61, s63, s61
    s_cselect_b64 vcc, -1, 0
    v_cndmask_b32 v167, v167, v165, vcc
    s_cmp_eq_u32 s{sW}, 6
    s_cselect_b32 s61, s60, s61
    s_cselect_b64 vcc, -1, 0
    v_cndmask_b32 v167, v167, v166, vcc
    s_lshr_b32 s62, s{sJ}, 1
    s_min_u32 s63, s62, 14
    s_mul_i32 s63, s63, 1536
    s_add_u32 s63, s63, {CSPG}
    s_lshl_b32 s62, s62, 9
    s_mul_i32 s64, s{sG}, {CSPQ_G}
    s_add_u32 s62, s62, s64
    s_add_u32 s62, s62, {CSPQ}
    v_and_b32 v165, 15, v{vL}
    v_min_u32 v165, 11, v165
    v_lshlrev_b32 v165, 7, v165
    v_bfe_u32 v166, v{vL}, 4, 1
    v_mul_u32_u24 v166, {CSPU - CSPG}, v166
    v_add3_u32 v165, v165, v166, s63
    v_and_b32 v166, 3, v{vL}
    v_lshlrev_b32 v166, 7, v166
    v_bfe_u32 v2, v{vL}, 2, 2
    v_min_u32 v2, 2, v2
    v_lshl_add_u32 v166, v2, 13, v166
    v_add_u32 v166, s62, v166
    v_cmp_gt_u32 vcc, 32, v{vL}
    s_nop 1
    v_cndmask_b32 v165, v166, v165, vcc
    s_cmp_eq_u32 s{sW}, {7 if OPT['cswarm'] else 9}
    s_cselect_b32 s61, 0, s61
    s_cselect_b64 vcc, -1, 0
    v_cndmask_b32 v167, v167, v165, vcc
    buffer_load_dword v165, v167, s[8:11], s61 offen
    """)

def warm_h(a, va=8):
    def fn():
        a.e(f"""
        v_min_u32 v{va}, 47, v{vL}
        v_lshlrev_b32 v{va}, 7, v{va}
        s_lshl_b32 s64, s{sG}, 3
        s_and_b32 s65, s{sJ}, 1
        s_lshl_b32 s65, s65, 2
        s_add_u32 s64, s64, s65
        s_lshr_b32 s65, s{sLW}, 10
        s_add_u32 s64, s64, s65
        s_mul_i32 s64, s64, {86*KB}
        s_lshr_b32 s65, s{sJ}, 1
        s_min_u32 s65, s65, 13
        s_mul_i32 s65, s65, 6144
        s_add_u32 s64, s64, s65
        s_add_u32 s64, s64, {HF}
        buffer_load_dword v{va+1}, v{va}, s[8:11], s64 offen
        s_add_u32 s64, s64, 6144
        s_cmp_lg_u32 s{sJ}, 28
        s_cbranch_scc0 .Lwh{a.uid}
        s_cmp_lg_u32 s{sJ}, 29
        s_cbranch_scc1 .Lwe{a.uid}
.Lwh{a.uid}:
        buffer_load_dword v{va+1}, v{va}, s[8:11], s64 offen
.Lwe{a.uid}:
        """)
        a.uid += 1
    fast_only(a, fn)

def prewrite_kv(a, off, D, q=False):
    a.e(f"""
    s_lshr_b32 s60, s{sLW}, 10
    s_lshl_b32 s61, s{sG}, 3
    s_and_b32 s62, s{sJ}, 1
    s_lshl_b32 s62, s62, 2
    s_add_u32 s61, s61, s62
    s_add_u32 s61, s61, s60
    s_lshr_b32 s62, s{sJ}, 1
    s_lshl_b32 s63, s62, 18
    s_lshl_b32 s64, s61, 11
    s_add_u32 s63, s63, s64
    s_add_u32 s63, s63, {KV + off}
    s_add_u32 s64, s63, 0x20000
    """)
    for sr in (63, 64):
        for o in (0, 1024):
            a.e(f"buffer_store_dwordx4 {R(D)}, v{vL16}, s[8:11], s{sr} offen offset:{o} sc1")
    if q:
        a.e(f"s_mul_i32 s61, s61, {86*KB}\ns_lshl_b32 s62, s62, 11\ns_add_u32 s61, s61, s62\ns_add_u32 s61, s61, {QF0}")
        for o in (0, 1024):
            a.e(f"buffer_store_dwordx4 {R(D)}, v{vL16}, s[8:11], s61 offen offset:{o} sc1")

def prewrite(a):
    D = 168
    a.e(f"""
    s_lshr_b32 s60, s{sLW}, 10
    s_lshl_b32 s61, s{sG}, 3
    s_lshl_b32 s62, s60, 1
    s_add_u32 s62, s62, s61
    s_lshl_b32 s62, s62, 15
    s_lshl_b32 s63, s{sJ}, 10
    s_add_u32 s62, s62, s63
    s_add_u32 s62, s62, {OF}
    buffer_store_dwordx4 {R(D)}, v{vL16}, s[8:11], s62 offen sc1
    s_add_u32 s62, s62, 32768
    buffer_store_dwordx4 {R(D)}, v{vL16}, s[8:11], s62 offen sc1
    s_and_b32 s62, s{sJ}, 3
    s_lshl_b32 s62, s62, 1
    s_add_u32 s62, s62, s61
    s_and_b32 s63, s60, 1
    s_add_u32 s62, s62, s63
    s_lshr_b32 s63, s{sJ}, 2
    s_lshl_b32 s63, s63, 1
    s_lshr_b32 s64, s60, 1
    s_add_u32 s63, s63, s64
    s_lshl_b32 s64, s62, 15
    s_lshl_b32 s65, s63, 11
    s_add_u32 s64, s64, s65
    s_add_u32 s64, s64, {XB}
    buffer_store_dwordx4 {R(D)}, v{vL16}, s[8:11], s64 offen sc1
    buffer_store_dwordx4 {R(D)}, v{vL16}, s[8:11], s64 offen offset:1024 sc1
    s_lshl_b32 s64, s62, 12
    s_lshr_b32 s65, s63, 2
    s_lshl_b32 s65, s65, 10
    s_add_u32 s64, s64, s65
    s_add_u32 s64, s64, {STB}
    buffer_store_dwordx4 {R(D)}, v{vL16}, s[8:11], s64 offen sc1
    s_and_b32 s62, s{sJ}, 1
    s_lshl_b32 s62, s62, 2
    s_add_u32 s62, s62, s61
    s_add_u32 s62, s62, s60
    s_mul_i32 s62, s62, {86*KB}
    s_lshr_b32 s63, s{sJ}, 1
    s_mul_i32 s63, s63, 6144
    s_min_u32 s63, s63, {80*KB}
    s_add_u32 s62, s62, s63
    s_add_u32 s62, s62, {HF}
    s_add_u32 s63, s62, 4096
    """)
    for i in range(6):
        a.e(f"buffer_store_dwordx4 {R(D)}, v{vL16}, s[8:11], s{62 + i // 4} offen offset:{(i % 4) * KB} sc1")
    if OPT["pwkv"]:
        prewrite_kv(a, LAY, D)

def res_load(a):
    L0 = a.label("rl0"); L1 = a.label("rl1")
    a.e(f"""
    s_cmp_ge_u32 s{sW}, 4
    s_cbranch_scc1 {L0}
    s_lshl_b32 s60, s{sG}, 3
    s_and_b32 s61, s{sJ}, 3
    s_lshl_b32 s61, s61, 1
    s_add_u32 s60, s60, s61
    s_and_b32 s61, s{sW}, 1
    s_add_u32 s60, s60, s61
    s_lshl_b32 s60, s60, 15          ; tb*32K
    s_lshr_b32 s61, s{sJ}, 2
    s_lshl_b32 s61, s61, 1
    s_lshr_b32 s62, s{sW}, 1
    s_add_u32 s61, s61, s62          ; fs
    s_cmp_eq_u32 s{sL}, 0
    s_cbranch_scc1 {L1}
    s_lshl_b32 s61, s61, 11
    s_add_u32 s60, s60, s61
    s_add_u32 s60, s60, s{sXN}
    buffer_load_dwordx4 {R(RS)}, v{vL16}, s[8:11], s60 offen sc1
    buffer_load_dwordx4 {R(RS+4)}, v{vL16}, s[8:11], s60 offen offset:1024 sc1
    s_branch {L0}
{L1}:
    s_load_dwordx2 s[64:65], s[0:1], {A_X}
    s_mov_b32 s66, {2*MB}
    s_mov_b32 s67, 0x00020000
    v_and_b32 v2, 31, v{vL}
    v_lshlrev_b32 v2, 10, v2
    v_lshrrev_b32 v167, 5, v{vL}
    v_lshl_add_u32 v2, v167, 3, v2
    s_lshl_b32 s61, s61, 6
    s_add_u32 s60, s60, s61
    s_waitcnt lgkmcnt(0)
    """)
    for i in range(4):
        a.e(f"buffer_load_dwordx2 v[{RS+2*i}:{RS+2*i+1}], v2, s[64:67], s60 offen offset:{16*i}")
    a.e(f"{L0}:")

def stage_attn(a, early, late, prefetch):
    QA, KF, VF, P, SA, SB, OA, TMP = 8, 24, 32, 48, 56, 72, 88, 152
    vK, vV = 160, 162
    C16 = 172
    def pl():
        a.e(f"""
        s_and_b32 s63, s{sJ}, 30
        s_lshl_b32 s63, 3, s63
        s_add_u32 s62, s{sFB}, 1
        """)
        poll(a, sGFL, "s63", 62)
    Lg = a.label("gsig")
    a.e(f"s_cmp_ge_u32 s{sW}, 4\ns_cbranch_scc1 {Lg}")
    arrive(a, 4, lambda: qkv_sig(a))
    a.e(f"{Lg}:")
    a.e("s_setprio 0")
    a.e(f"""
    s_and_b32 s32, s{sW}, 1
    s_lshr_b32 s33, s{sW}, 1
    s_lshl_b32 s36, s{sG}, 3
    s_lshl_b32 s37, s32, 2
    s_add_u32 s36, s36, s37
    s_add_u32 s34, s36, s33
    s_lshl_b32 s35, s{sJ}, 17
    s_add_u32 s35, s35, s{sLAY}
    s_add_u32 s35, s35, {KV}
    s_lshl_b32 s38, s33, 12
    s_lshl_b32 s46, s{sG}, 14
    s_add_u32 s46, s46, s38
    s_lshl_b32 s53, s{sL}, 11
    s_lshr_b32 s47, s{sJ}, 1
    s_lshl_b32 s47, s47, 7
    s_add_u32 s53, s53, s47
    s_add_u32 s53, s53, {QFL}
    s_lshl_b32 s39, s{sJ}, 10
    s_add_u32 s39, s39, s{sQB}
    s_mul_i32 s36, s36, {86*KB}
    s_add_u32 s39, s39, s36
    """)
    for i in range(4):
        a.e(f"s_add_u32 s37, s33, {i}\ns_and_b32 s37, s37, 3\ns_mul_i32 s37, s37, {86*KB}\ns_add_u32 s{40+i}, s39, s37")
    only_wave0(a, pl, int(OPT['pw']))
    a.bar()
    a.stamp(4)
    a.vm = 0
    def young(fn):
        L = a.label("yg")
        a.e(f"s_cmp_lt_u32 s{sW}, 4\ns_cbranch_scc1 {L}\ns_setprio 3")
        r = fn()
        a.e(f"s_setprio 0\n{L}:")
        return r
    def kv_issue(n=1):
        out = []
        for _ in range(n):
            a.e(f"s_mov_b32 m0, s54\ns_add_u32 s39, s55, s35\ns_add_u32 s54, s54, 16384\ns_add_u32 s55, s55, 16384")
            for b in range(4):
                i = a.vmem(f"buffer_load_dwordx4 v{vL16}, s[8:11], s39 offen offset:{b*KB} sc1 lds")
            a.e("s_and_b32 s55, s55, 0x1ffff")
            out.append(i)
        return out
    a.e(f"s_mov_b32 m0, s38\ns_add_u32 s39, s46, s35")
    a.vmem(f"buffer_load_dwordx4 v{vL16}, s[8:11], s39 offen sc1 lds")
    a.vmem(f"buffer_load_dwordx4 {R(QA)}, v{vL16}, s[8:11], s40 offen sc1")
    a.vmem(f"buffer_load_dwordx4 v{vL16}, s[8:11], s39 offen offset:1024 sc1 lds")
    for i in range(1, 4):
        a.vmem(f"buffer_load_dwordx4 {R(QA+4*i)}, v{vL16}, s[8:11], s{40+i} offen sc1")
    a.vmem(f"buffer_load_dwordx4 v{vL16}, s[8:11], s39 offen offset:2048 sc1 lds")
    kvc = [a.vmem(f"buffer_load_dwordx4 v{vL16}, s[8:11], s39 offen offset:3072 sc1 lds")]
    a.e(f"""
    s_lshl_b32 s37, s33, 12
    v_add_u32 v{vK}, s37, v{vL16}
    v_lshrrev_b32 v2, 5, v{vL}
    v_lshlrev_b32 v{vV}, 8, v2
    v_and_b32 v2, 15, v{vL}
    v_lshl_add_u32 v{vV}, v2, 4, v{vV}
    v_add_u32 v{TMP+7}, 1024, v{vV}
    v_add_u32 v{vV}, s37, v{TMP+7}
    s_mov_b32 s44, 0x0000ffff
    s_mov_b32 s45, 0x0000ffff
    v_and_b32 v2, 27, v{vL}
    v_cmp_eq_u32 vcc, 16, v2
    v_mov_b32 v{TMP}, 0x3f803f80
    s_nop 0
    v_cndmask_b32 v{TMP}, 0, v{TMP}, vcc
    """)
    for i in range(16):
        a.e(f"v_mov_b32 v{VF+i}, v{TMP}")
    XA_ = 228
    def xbase(w):
        return f"s_and_b32 s47, s{w}, 3\ns_mul_i32 s47, s47, 6912\ns_lshr_b32 s49, s{w}, 2\ns_lshl_b32 s49, s49, 16\ns_add_u32 s47, s47, s49\ns_add_u32 s47, s47, {64*KB}"
    def xsetup():
        a.e(xbase(sW))
        a.e(f"v_add_u32 v{XA_}, s47, v{vL16}\nv_add_u32 v{XA_+1}, s47, v{vL4}")
        for i in (1, 2, 3):
            a.e(f"s_sub_u32 s48, s33, {i}\ns_and_b32 s48, s48, 3\ns_lshl_b32 s48, s48, 1\ns_add_u32 s48, s48, s32")
            a.e(xbase(48))
            a.e(f"v_add_u32 v{XA_+2*i}, s47, v{vL16}\nv_add_u32 v{XA_+2*i+1}, s47, v{vL4}")
        a.e(f"""
        s_lshl_b32 s48, s34, 15
        s_lshl_b32 s49, s{sJ}, 10
        s_add_u32 s48, s48, s49
        s_add_u32 s48, s48, s{sLB}
        s_add_u32 s48, s48, {OF}
        """)
    def owrite(i):
        O_ = OA + 16 * i; o = (i - 1) * 2304
        a.e(f"ds_write_b128 v{XA_}, {R(O_)} offset:{o}\nds_write_b128 v{XA_}, {R(O_+4)} offset:{o+1024}\nds_write_b32 v{XA_+1}, v{O_+8} offset:{o+2048}")
    a.e(f"""
    s_lshl_b32 s54, s{sLW}, 2
    s_lshl_b32 s55, s{sG}, 14
    s_add_u32 s55, s55, s54
    s_add_u32 s54, s54, 16384
    s_add_u32 s55, s55, 16384
    s_and_b32 s55, s55, 0x1ffff
    s_waitcnt vmcnt(5)
    """)
    a.stamp(5)
    a.rstamp(26)
    def rdK(slot, o):
        a.e(f"ds_read_b128 {R(KF+4*slot)}, v{vK} offset:{o}")
    def rdV(slot, o):
        a.e(f"s_mov_b64 exec, s[44:45]\nds_read_b128 {R(VF+8*slot)}, v{vV} offset:{o}\nds_read_b128 {R(VF+8*slot+4)}, v{vV} offset:{o+512}\ns_mov_b64 exec, -1")
    rdK(0, 0); rdV(0, 0)
    a.e("s_waitcnt lgkmcnt(0)")
    a.e(mfma(SA, KF, QA, "0"))
    a.e("s_nop 7\ns_nop 3")
    base = "QK E0 E1 E2 E3 E4 E5 PV2p E6 E7 C0 C1 E8 C2 E9 C3 E10 E11 PV1 E12 E13 C4 E14 E15 C5 C6 C7"
    scheds = [base, base, base.replace("QK", "QK rK").replace("PV2p", "PV2p rV"), "W0 " + base]
    def bgpoll():
        Lp = a.label("bgp"); Ld = a.label("bgd")
        a.e(f"""
        s_mov_b32 s61, {BGF}
        s_mov_b32 s60, 0
{Lp}:
        buffer_load_dwordx4 v[168:171], v{vL16}, s[8:11], s61 offen sc1
        s_add_u32 s60, s60, 1
        s_waitcnt vmcnt(0)
        v_and_b32 v168, v168, v169
        v_and_b32 v170, v170, v171
        v_and_b32 v168, v168, v170
        v_cmp_ne_u32 vcc, 1, v168
        s_cmp_gt_u32 s60, 0x4000
        s_cbranch_scc1 {Ld}
        s_cbranch_vccnz {Lp}
{Ld}:
        """)
    def layer1(fn):
        L1 = a.label("l1")
        a.e(f"s_cmp_eq_u32 s{sL}, 0\ns_cbranch_scc1 {L1}")
        vm = a.vm
        fn()
        a.vm = vm
        a.e(f"{L1}:")
    def phase(lp, first=False, lastit=False, boff=0):
        u, p = divmod(lp, 4)
        Sc = SA if (p & 1) == 0 else SB; Sn = SB if (p & 1) == 0 else SA
        Oc = OA + 16 * p; Op = OA + 16 * ((p - 1) & 3)
        for tok in scheds[p].split():
            if lastit and u == 1 and (tok in ("rK", "rV", "W0") or (tok == "QK" and p == 3)):
                continue
            if tok == "QK":
                a.e(mfma(Sn, KF + 4 * ((u if p < 3 else u + 1) & 1), QA + 4 * ((p + 1) & 3), "0"))
            elif tok == "PV1":
                a.e(mfma(Oc, VF + 8 * u, P, "0" if first and u == 0 else None))
                if lastit and lp >= 6: a.e("s_nop 0"); owrite(lp - 5)
            elif tok == "PV2p":
                if not (first and lp == 0): a.e(mfma(Op, VF + 8 * ((u - 1 if p == 0 else u) & 1) + 4, P + 4))
            elif tok[0] == "E": i = int(tok[1:]); a.e(f"v_exp_f32 v{Sc+i}, v{Sc+i}")
            elif tok[0] == "C": i = int(tok[1:]); a.e(f"v_cvt_pk_bf16_f32 v{P+i}, v{Sc+2*i}, v{Sc+2*i+1}")
            elif tok == "rK": rdK(1 - u, boff + (16384 if u else 2048))
            elif tok == "rV": rdV(1 - u, boff + (16384 if u else 2048))
            elif tok[0] == "W": a.e(f"s_waitcnt lgkmcnt({tok[1:]})")
    def adv():
        a.e(f"v_add_u32 v{vK}, 0x4000, v{vK}\nv_add_u32 v{vV}, 0x4000, v{vV}")
    def cold_block(label, back, fn):
        lines = a.capture(fn)
        a.cold.append(f"{label}:\n" + "\n".join(lines) + f"\ns_branch {back}")
    def young_cold(fn):
        Lc = a.label("yc"); Lb = a.label("yb")
        a.e(f"s_cmp_ge_u32 s{sW}, 4\ns_cbranch_scc1 {Lc}\n{Lb}:")
        cold_block(Lc, Lb, lambda: (a.e("s_setprio 3"), fn(), a.e("s_setprio 0")))
    for lp in range(8):
        if lp == 0:
            a.e("s_waitcnt vmcnt(2)")
            young_cold(lambda: (a.e("s_mov_b32 s62, 1"), poll(a, 53, "0xffff", 62, wide=False), kv_issue(1), xsetup()))
        if lp == 2:
            Lo = a.label("old")
            a.e(f"s_cmp_ge_u32 s{sW}, 4\ns_cbranch_scc1 {Lo}\ns_waitcnt vmcnt(0)\n{Lo}:")
        if lp == 3:
            res_load(a)
        if lp == 6:
            a.e("s_waitcnt vmcnt(0)"); a.bar()
            young_cold(lambda: (kv_issue(2), layer0(a, lambda: [(a.e(f"s_sub_u32 s76, s{sW}, {4*h}"), bg_issue(a, 76, True)) for h in range(2)])))
        phase(lp, first=True)
    adv()
    def cpf():
        Lpc = a.label("pc")
        a.e(f"""
        s_getpc_b64 s[60:61]
{Lpc}:
        s_sub_u32 s60, s60, {Lpc} - L_wo_start
        s_subb_u32 s61, s61, 0
        s_lshl_b32 s62, s{sJ}, 2
        s_lshr_b32 s63, s{sLW}, 10
        s_add_u32 s62, s62, s63
        s_lshl_b32 s62, s62, 8
        s_min_u32 s62, s62, L_code_end - L_wo_start - 256
        v_add_u32 v166, s62, v{vL4}
        global_load_dword v165, v166, s[60:61]
        """)
    L_loop = a.label("aloop"); L_w = a.label("aw")
    a.e(f"s_mov_b32 s56, 1\ns_mul_i32 s57, s{sL}, 5\ns_sub_u32 s58, 1, s{sL}\n{L_loop}:")
    for lp in range(16):
        if lp == 6:
            a.e(f"""
            s_waitcnt vmcnt(16)
            s_cmp_lg_u32 s56, s57
            s_cbranch_scc0 {L_w}
            s_waitcnt vmcnt(8)
            s_cmp_lg_u32 s56, s58
            s_cbranch_scc0 {L_w}
            s_waitcnt vmcnt(0)
{L_w}:
            s_barrier
            """)
            a.nbar += 3
            def ev():
                L3 = a.label("e3"); L5 = a.label("e5"); Le = a.label("ee")
                a.e(f"s_cmp_eq_u32 s56, 3\ns_cbranch_scc1 {L3}\ns_cmp_eq_u32 s56, 5\ns_cbranch_scc1 {L5}")
                kv_issue(2)
                layer0(a, lambda: [a.e("s_waitcnt vmcnt(8)")] + [(a.e(f"s_sub_u32 s76, s{sW}, {4*h}"), bg_issue(a, 76, False), bg_pack(a, 76)) for h in range(2)] + ([a.e("s_waitcnt vmcnt(0)"), bg_signal(a)] if OPT['bgs'] == 'a' else []))
                a.e(f"s_branch {Le}\n{L3}:")
                if OPT['bgs'] == 'b': layer0(a, lambda: bg_signal(a))
                kv_issue(2)
                if OPT["bg30"]:
                    layer0(a, bgpoll)
                    [dma_chunk(a, c) for c in early]
                else:
                    layer1(lambda: [dma_chunk(a, c) for c in early])
                if OPT['pw_on']: layer0(a, lambda: fast_only(a, lambda: prewrite(a)))
                a.e(f"s_branch {Le}\n{L5}:")
                fast_only(a, lambda: warm_attn(a))
                layer0(a, cpf)
                if not OPT["bg30"]: layer0(a, lambda: (bgpoll(), [dma_chunk(a, c) for c in early]))
                prefetch()
                a.e(f"{Le}:")
            young_cold(ev)
        phase(lp % 8, boff=16384 * (lp // 8))
    a.e(f"v_add_u32 v{vK}, 0x8000, v{vK}\nv_add_u32 v{vV}, 0x8000, v{vV}\ns_add_u32 s56, s56, 2\ns_cmp_lt_u32 s56, 7\ns_cbranch_scc1 {L_loop}")
    for lp in range(8):
        if lp == 4:
            Lo = a.label("old")
            a.e(f"s_cmp_ge_u32 s{sW}, 4\ns_cbranch_scc1 {Lo}")
            xsetup()
            a.e(f"{Lo}:")
        phase(lp, lastit=True)
    a.e("s_setprio 0\ns_nop 0")
    a.e(mfma(OA + 48, VF + 8 + 4, P + 4))
    a.stamp(6)
    a.e("s_nop 11")
    owrite(3)
    a.e("s_waitcnt vmcnt(0) lgkmcnt(0)")
    a.bar()
    for i in (1, 2, 3):
        O_ = OA + 16 * i; o = (i - 1) * 2304
        a.e(f"ds_read_b128 {R(O_)}, v{XA_+2*i} offset:{o}\nds_read_b128 {R(O_+4)}, v{XA_+2*i} offset:{o+1024}\nds_read_b32 v{O_+8}, v{XA_+2*i+1} offset:{o+2048}")
    O = OA
    for i in (1, 2, 3):
        a.e(f"s_waitcnt lgkmcnt({9 - 3*i})")
        for r in range(4):
            a.e(f"v_pk_add_f32 v[{O+2*r}:{O+2*r+1}], v[{O+2*r}:{O+2*r+1}], v[{O+16*i+2*r}:{O+16*i+2*r+1}]")
        a.e(f"v_add_f32 v{O+8}, v{O+8}, v{O+16*i+8}")
    def finish():
        a.e(f"v_rcp_f32 v{TMP+5}, v{O+8}\ns_nop 0")
        for i in range(8):
            a.e(f"v_mul_f32 v{SB+i}, v{O+i}, v{TMP+5}")
        for i in range(4):
            a.e(f"v_cvt_pk_bf16_f32 v{SB+8+i}, v{SB+2*i}, v{SB+2*i+1}")
        stores(a, [f"buffer_store_dwordx4 {R(SB+8)}, v{vL16}, s[8:11], s48 offen"])
    a.vm = 0
    finish()
    st = a.vm - 1
    L_fin = a.label("afin")
    a.e(f"""
    v_max3_f32 v{TMP}, abs(v{O}), abs(v{O+1}), abs(v{O+2})
    v_max3_f32 v{TMP}, v{TMP}, abs(v{O+3}), abs(v{O+4})
    v_max3_f32 v{TMP}, v{TMP}, abs(v{O+5}), abs(v{O+6})
    v_add_f32 v{TMP+1}, v{O}, v{O+1}
    v_add_f32 v{TMP+2}, v{O+2}, v{O+3}
    v_add_f32 v{TMP+3}, v{O+4}, v{O+5}
    v_add_f32 v{TMP+4}, v{O+6}, v{O+7}
    v_max_f32 v{TMP}, v{TMP}, abs(v{O+7})
    v_add_f32 v{TMP+1}, v{TMP+1}, v{TMP+2}
    v_add_f32 v{TMP+3}, v{TMP+3}, v{TMP+4}
    v_add_f32 v{TMP+1}, v{TMP+1}, v{TMP+3}
    s_mov_b32 s50, {f32(2.0**-80)}
    s_mov_b32 s51, {f32(2.0**80)}
    s_mov_b32 s52, {f32(2.0**120)}
    v_cmp_le_f32 s[54:55], s50, v{O+8}
    v_cmp_ge_f32 s[56:57], s51, v{O+8}
    v_cmp_ge_f32 s[58:59], s52, v{TMP}
    v_cmp_o_f32 vcc, v{TMP+1}, v{TMP+1}
    s_nop 3
    s_and_b64 s[54:55], s[54:55], s[56:57]
    s_and_b64 s[58:59], s[58:59], vcc
    s_and_b64 s[54:55], s[54:55], s[58:59]
    s_cmp_eq_u64 s[54:55], -1
    s_cbranch_scc1 {L_fin}
    """)
    L_mx = a.label("amx"); L_re = a.label("are")
    a.e(f"""
    v_mov_b32 v{TMP}, 0xff800000
    s_mov_b32 s46, 0
    s_mov_b32 s47, s35
{L_mx}:
    buffer_load_dwordx4 {R(KF)}, v{vL16}, s[8:11], s47 offen sc1
    s_waitcnt vmcnt(0)
    """)
    a.e(mfma(SA, KF, QA, "0"))
    a.e("s_nop 15")
    for i in range(8):
        a.e(f"v_max3_f32 v{TMP}, v{TMP}, v{SA+2*i}, v{SA+2*i+1}")
    a.e(f"""
    s_add_u32 s47, s47, 2048
    s_add_u32 s46, s46, 1
    s_cmp_lt_u32 s46, 64
    s_cbranch_scc1 {L_mx}
    v_mov_b32 v{TMP+1}, v{TMP}
    s_nop 1
    v_permlane32_swap_b32 v{TMP}, v{TMP+1}
    s_nop 1
    v_max_f32 v{TMP}, v{TMP}, v{TMP+1}
    s_mov_b32 s46, 0
    s_mov_b32 s47, s35
    """)
    for i in range(16):
        a.e(f"v_sub_f32 v{C16+i}, 0, v{TMP}\nv_mov_b32 v{O+i}, 0")
    a.e(f"""
{L_re}:
    buffer_load_dwordx4 {R(KF)}, v{vL16}, s[8:11], s47 offen sc1
    s_mov_b64 exec, s[44:45]
    buffer_load_dwordx4 {R(VF)}, v{TMP+7}, s[8:11], s47 offen sc1
    buffer_load_dwordx4 {R(VF+4)}, v{TMP+7}, s[8:11], s47 offen offset:512 sc1
    s_mov_b64 exec, -1
    s_waitcnt vmcnt(0)
    """)
    a.e(mfma(SA, KF, QA, R(C16, 16)))
    a.e("s_nop 15")
    for i in range(16):
        a.e(f"v_exp_f32 v{SA+i}, v{SA+i}")
    a.e("s_nop 0")
    for i in range(8):
        a.e(f"v_cvt_pk_bf16_f32 v{P+i}, v{SA+2*i}, v{SA+2*i+1}")
    a.e("s_nop 1")
    a.e(mfma(O, VF, P))
    a.e(mfma(O, VF + 4, P + 4))
    a.e(f"""
    s_add_u32 s47, s47, 2048
    s_add_u32 s46, s46, 1
    s_cmp_lt_u32 s46, 64
    s_cbranch_scc1 {L_re}
    s_nop 15
    """)
    vm = a.vm
    finish()
    a.vm = vm
    a.e(f"s_waitcnt vmcnt(0)\n{L_fin}:")
    a.e(f"s_add_u32 s61, s{sFB}, 2\ns_lshr_b32 s62, s{sW10}, 8\nv_mov_b32 v2, s61\ns_add_u32 s62, s62, s{sMYF}\ns_mov_b64 exec, 1\ns_waitcnt vmcnt(0)")
    a.stamp(7)
    a.rstamp(27)
    stores(a, [f"buffer_store_dword v2, v{vZ}, s[8:11], s62 offen"])
    a.e("s_mov_b64 exec, -1")
    a.vm = 0
    by_role(a, lambda: None, lambda: [dma_chunk(a, c) for c in late])

def stage_proj(a, CH, bpos, need, H, src, src_tb_bytes, res, dst, stat, dep_mask, dep_val, sig_val, issue, final_ok, st0):
    ACC, FR, TMP, TOK, NT, D, WR = 12, 44, 84, 100, int(OPT['pnt']), int(OPT['pD']), 192
    KEEP, SEND = ACC + 16, ACC
    XC = XCH if not final_ok else 48 * KB
    vA = 92
    if True:
        def pl():
            if dep_mask == "all":
                m = "-1"
            else:
                a.e(f"s_bfe_u32 s63, s{sJ}, 0x10001\ns_lshl_b32 s63, 0x15555555, s63")
                m = "s63"
            a.e(f"s_add_u32 s62, s{sFB}, {dep_val}")
            poll(a, sGFL, m, 62, wide=8 if dep_mask == "all" else True)
    def comp():
        a.e(f"""
        s_and_b32 s39, s{sW}, 1
        s_lshr_b32 s35, s{sW}, 1
        s_lshl_b32 s32, s{sG}, 3
        s_and_b32 s33, s{sJ}, 3
        s_lshl_b32 s33, s33, 1
        s_add_u32 s32, s32, s33
        s_add_u32 s32, s32, s39
        s_lshr_b32 s33, s{sJ}, 2
        s_mul_i32 s34, s32, {src_tb_bytes}
        s_mul_i32 s40, s35, {H*1024}
        s_add_u32 s34, s34, s40
        s_add_u32 s34, s34, s{sLB}
        s_add_u32 s34, s34, {src}
        s_lshl_b32 s36, s33, 1
        s_add_u32 s36, s36, s35
        s_lshl_b32 s37, s32, 15
        s_lshl_b32 s40, s36, 11
        s_add_u32 s37, s37, s40
        s_mul_i32 s40, s35, 3072
        s_lshl_b32 s41, s35, 10
        s_add_u32 s41, s41, 1024
        v_add_u32 v{vA}, s40, v{vL16}
        v_add_u32 v{vA+1}, s40, v{vW1}
        v_add_u32 v{vA+2}, s40, v{vW2}
        v_add_u32 v{vA+3}, s41, v{vL16}
        v_add_u32 v{vA+4}, s41, v{vW1}
        v_add_u32 v{vA+5}, s41, v{vW2}
        s_lshl_b32 s42, s{sW}, 12
        s_xor_b32 s43, s42, 0x2000
        s_add_u32 s42, s42, {XC}
        s_add_u32 s43, s43, {XC}
        v_add_u32 v{TMP}, s42, v{vL16}
        v_add_u32 v{TMP+1}, s43, v{vL16}
        s_lshl_b32 s44, s32, 12
        s_lshr_b32 s45, s36, 2
        s_lshl_b32 s45, s45, 10
        s_add_u32 s44, s44, s45
        s_and_b32 s45, s36, 3
        s_lshl_b32 s45, s45, 2
        s_add_u32 s44, s44, s45
        {f's_add_u32 s44, s44, s{sSN}' if final_ok else f's_add_u32 s44, s44, s{sLB}'}
        {'' if final_ok else f's_add_u32 s44, s44, {STB}'}
        {f's_add_u32 s37, s37, s{sXN}' if final_ok else f's_add_u32 s37, s37, s{sLB}'}
        {'' if final_ok else f's_add_u32 s37, s37, {XB}'}
        """)
        regch = None
        if final_ok:
            regch = 9
        for r in range(8):
            a.e(f"v_lshlrev_b32 v{KEEP+2*r}, 16, v{RS+r}\nv_and_b32 v{KEEP+2*r+1}, 0xffff0000, v{RS+r}")
        if OPT['dw0'] and final_ok: only_wave0(a, pl)
        a.bar()
        a.stamp(st0)
        tp = TokPipe(a, TOK, NT, H, 34)
        sched = [(ks, f) for ks in range(H) for f in range(2)]
        frags = []
        for j, f in sched:
            i = 1 - f
            frags.append(("reg", WR + 8 * (j % 4) + 4 * (1 - i)) if j // 4 == regch else lds_win(CH[j // 4].lds * KB + (j % 4) * 4 * KB, (vA + 3 * i, vA + 3 * i + 1, vA + 3 * i + 2)))
        fp = FragPipe(a, FR, D, frags)
        def em(ks, f, w, t):
            a.e(mfma(ACC + 16 * f, w, t, "0" if ks == 0 and f == 0 else None))
        gemm_loop(a, fp, tp, sched, set(8 * c for c in bpos), em, tok0=(int(OPT['ptok0']) if final_ok else int(OPT['wtok0'])), tok_at=set(range(0, 2 * H, 2)))
        a.stamp(st0 + 1)
        RCV = SEND
        a.e("s_nop 10")
        for q in range(4):
            a.e(f"ds_write_b128 v{TMP}, {R(SEND+4*q)} offset:{1024*q}")
        a.e("s_waitcnt lgkmcnt(0)")
        if OPT["hstamps"]: a.stamp(18 if H == 16 else 22)
        a.bar()
        if OPT["hstamps"]: a.stamp(19 if H == 16 else 23)
        for q in range(4):
            a.e(f"ds_read_b128 {R(SEND+4*q)}, v{TMP+1} offset:{1024*q}")
        PK = RS
        for q in range(4):
            a.e(f"s_waitcnt lgkmcnt({3-q})")
            for r in range(2 * q, 2 * q + 2):
                a.e(f"v_pk_add_f32 v[{KEEP+2*r}:{KEEP+2*r+1}], v[{KEEP+2*r}:{KEEP+2*r+1}], v[{RCV+2*r}:{RCV+2*r+1}]")
            for r in range(2 * q, 2 * q + 2):
                a.e(f"v_cvt_pk_bf16_f32 v{PK+r}, v{KEEP+2*r}, v{KEEP+2*r+1}")
        L_fin = a.label("pfin"); L_dn = a.label("pdn")
        if final_ok:
            a.e(f"s_cmp_lg_u32 s{sL}, 0\ns_cbranch_scc1 {L_fin}")
        stores(a, [f"buffer_store_dwordx4 {R(PK)}, v{vL16}, s[8:11], s37 offen",
                   f"buffer_store_dwordx4 {R(PK+4)}, v{vL16}, s[8:11], s37 offen offset:1024"])
        stats_f32(a, KEEP, TMP + 2, TMP + 4)
        stores(a, [f"buffer_store_dword v{TMP+2}, v{vL16}, s[8:11], s44 offen"])
        if final_ok:
            a.e(f"""
            s_branch {L_dn}
{L_fin}:
            v_and_b32 v{TMP}, 31, v{vL}
            v_lshlrev_b32 v{TMP}, 10, v{TMP}
            v_lshrrev_b32 v{TMP+1}, 5, v{vL}
            v_lshl_add_u32 v{TMP}, v{TMP+1}, 4, v{TMP}
            s_lshl_b32 s44, s32, 15
            s_lshl_b32 s45, s36, 6
            s_add_u32 s44, s44, s45
            v_permlane32_swap_b32 v{PK}, v{PK+2}
            v_permlane32_swap_b32 v{PK+1}, v{PK+3}
            v_permlane32_swap_b32 v{PK+4}, v{PK+6}
            v_permlane32_swap_b32 v{PK+5}, v{PK+7}
            buffer_store_dwordx4 {R(PK)}, v{TMP}, s[12:15], s44 offen
            buffer_store_dwordx4 {R(PK+4)}, v{TMP}, s[12:15], s44 offen offset:32
            {'' if OPT['stamp'] else 's_endpgm'}
{L_dn}:
            """)
        if OPT["hstamps"]: a.stamp(20 if H == 16 else 24)
        a.bar()
        if OPT["hstamps"]: a.stamp(21 if H == 16 else 25)
        signal_wave(a, sig_val, st0 + 2)
    def load():
        if not (OPT['dw0'] and final_ok): only_wave0(a, pl, int(OPT['pw']))
        if final_ok and OPT['wb'] != '0':
            def wb():
                L = a.label("wb")
                a.e(f"s_cmp_eq_u32 s{sL}, 0\ns_cbranch_scc1 {L}\ns_cmp_ge_u32 s{sJ}, {OPT['wb']}\ns_cbranch_scc1 {L}\nbuffer_wbl2 sc1\n{L}:")
            only_wave0(a, wb, int(OPT['pw']))
        loader_stage(a, need + [None, None], issue, prio=0)
    by_role(a, comp, load)

def dep_half_poll(a, sj, val):
    a.e(f"s_and_b32 s63, s{sj}, 1\ns_lshl_b32 s63, s63, 1\ns_lshl_b32 s63, 0x33333333, s63\ns_add_u32 s62, s{sFB}, {val}")
    poll(a, sGFL, "s63", 62)

def stage_gu(a, G, need, issue):
    ACC, FR, ST, CSO, TMP, TKO, TOK, NT, D = 8, 104, 128, 144, 168, 180, 184, 13, 6
    def comp():
        a.e(f"""
        s_lshl_b32 s32, s{sG}, 3
        s_and_b32 s33, s{sJ}, 1
        s_lshl_b32 s33, s33, 2
        s_add_u32 s32, s32, s33
        s_add_u32 s32, s32, s{sW}
        s_lshr_b32 s33, s{sJ}, 1
        s_lshl_b32 s34, s32, 15
        s_add_u32 s34, s34, s{sLB}
        s_add_u32 s34, s34, {XB}
        s_lshl_b32 s35, s32, 12
        s_add_u32 s35, s35, s{sLB}
        s_add_u32 s35, s35, {STB}
        s_min_u32 s38, s33, 14
        s_mul_i32 s36, s38, 1536
        s_add_u32 s37, s36, {CSPU}
        s_add_u32 s36, s36, {CSPG}
        s_mul_i32 s38, s32, {86*KB}
        s_mul_i32 s39, s33, 6144
        s_add_u32 s38, s38, s39
        s_add_u32 s38, s38, s{sLB}
        s_add_u32 s38, s38, {HF}
        """)
        a.e(f"v_and_b32 v{TMP+9}, 31, v{vL}\nv_lshlrev_b32 v{TMP+9}, 2, v{TMP+9}\nv_lshrrev_b32 v{TMP+1}, 5, v{vL}\nv_lshl_add_u32 v{TMP+9}, v{TMP+1}, 8, v{TMP+9}\ns_mov_b32 s59, 0x05040100")
        for f in range(6):
            a.e(f"v_mov_b32 v{CSO+4*f+3}, 0")
        L_idle = a.label("gidle"); L_join = a.label("gjoin")
        if OPT["gidle"]:
            a.e(f"s_cmp_ge_u32 s{sJ}, 30\ns_cbranch_scc1 {L_idle}")
        a.bar()
        a.stamp(11)
        L_short = a.label("gshort")
        if OPT["gshort"]:
            a.e(f"s_cmp_ge_u32 s{sJ}, 28\ns_cbranch_scc1 {L_short}")
        tp = TokPipe(a, TOK, NT, 32, 34)
        last = [None]
        def ld(s_):
            return lambda: last.__setitem__(0, a.vmem(s_))
        aux = [ld(f"buffer_load_dwordx4 {R(ST+4*q)}, v{vL16}, s[8:11], s35 offen offset:{1024*q} sc1") for q in range(4)]
        aux += [ld(f"buffer_load_dword v{CSO+4*(2*sub+gu)+e}, v{TMP+9}, s[8:11], s{36+gu} offen offset:{512*sub + 128*e} sc1") for sub in range(3) for gu in range(2) for e in range(2)]
        vMean, vRstd = TMP, TMP + 2
        def fill_fn(nf=6):
            a.wait_vm(last[0])
            stats_finish(a, ST, vMean, vRstd, TMP + 1)
            split_hilo(a, vMean, TKO, TMP + 1, "tok")
            for f in range(nf):
                a.e(f"v_perm_b32 v{CSO+4*f+2}, v{CSO+4*f+1}, v{CSO+4*f}, s59")
            a.e(f"v_mul_f32 v{TMP+4}, v{vRstd}, v{vRstd}\nv_mul_f32 v{TMP+5}, v{vRstd}, v{vRstd}")
            for f in range(nf):
                a.e(mfma(ACC + 16 * f, CSO + 4 * f, TKO))
        TL = int(OPT['gTL'])
        sched = [(ks, f) for ks in range(32 - TL) for f in range(6)] + [(ks, 2 * pr + f) for pr in range(3) for ks in range(32 - TL, 32) for f in range(2)]
        frags = [lds_win(G[ks // 4].lds * KB + ((ks % 4) * 6 + f) * KB) for ks, f in sched]
        fp = FragPipe(a, FR, D, frags)
        def em(ks, f, w, t):
            a.e(mfma(ACC + 16 * f, w, t, "0" if ks == 0 else None))
        def epi(sub, packed):
            Gr = ACC + 32 * sub; U = Gr + 16
            if packed:
                for r in range(8):
                    a.e(f"v_pk_mul_f32 v[{Gr+2*r}:{Gr+2*r+1}], v[{Gr+2*r}:{Gr+2*r+1}], v[{TMP+4}:{TMP+5}]")
                for r in range(8):
                    a.e(f"v_pk_mul_f32 v[{Gr+2*r}:{Gr+2*r+1}], v[{Gr+2*r}:{Gr+2*r+1}], v[{U+2*r}:{U+2*r+1}]")
            else:
                for r in range(16):
                    a.e(f"v_mul_f32 v{Gr+r}, v{Gr+r}, v{TMP+4}")
                for r in range(16):
                    a.e(f"v_mul_f32 v{Gr+r}, v{Gr+r}, v{U+r}")
            for r in range(8):
                a.e(f"v_cvt_pk_bf16_f32 v{Gr+r}, v{Gr+2*r}, v{Gr+2*r+1}")
            def st():
                L = a.label("gsk")
                a.e(f"s_cmp_ge_u32 s33, {15 if sub == 0 else 14}\ns_cbranch_scc1 {L}\ns_add_u32 s39, s38, {2048*sub}")
                stores(a, [f"buffer_store_dwordx4 {R(Gr)}, v{vL16}, s[8:11], s39 offen",
                           f"buffer_store_dwordx4 {R(Gr+4)}, v{vL16}, s[8:11], s39 offen offset:1024"])
                a.e(f"{L}:")
            if packed: st()
            else: a.group(st)
        P0 = 6 * (32 - TL)
        gemm_loop(a, fp, tp, sched, set(range(24, P0 + 1, 24)), em, aux=aux, tok_at=set(range(1, P0, 3)), **{'A': dict(tok0=6), 'B': dict(tok0=3, aux_late=True, aux_at=set(range(0, 48, 3))), 'C': dict(tok0=3, aux_late=True, aux_at=set(range(2, 42, 4))), 'D': dict(tok0=3)}[OPT['guv']],
                  fills={60: lambda: a.capture(fill_fn), P0 + 2 * TL + 3: lambda: a.capture(lambda: epi(0, False)),
                         P0 + 4 * TL + 3: lambda: a.capture(lambda: epi(1, False))}, per_gap=(int(OPT['gpg']), P0, int(OPT['gpt'])), fgrp=int(OPT['gfg']))
        a.e(f"{L_join}:")
        cold = [f"{L_idle}:", f"v_lshlrev_b32 v8, 7, v{vL}", f"s_and_b32 s40, s{sJ}, 1", "s_lshl_b32 s40, s40, 2", f"s_add_u32 s40, s40, s{sW}",
                f"s_mul_i32 s41, s40, {172*KB}", f"s_add_u32 s41, s41, {WPD + 64*KB}", "s_barrier"]
        Lq = a.label("gq"); Lq0 = a.label("gq0")
        cold += [f"s_cmp_eq_u32 s{sL}, 0", f"s_cbranch_scc1 {Lq0}"]
        for i in range(int(OPT["gd"])):
            cold += [f"buffer_load_dword v9, v8, s[8:11], s41 offen", "s_add_u32 s41, s41, 8192"]
        cold += [f"s_branch {Lq}", f"{Lq0}:", f"s_mul_i32 s41, s40, {192*KB}", f"s_add_u32 s41, s41, {WPQ}", f"s_add_u32 s42, s41, {96*KB}"]
        for i in range(int(OPT["gq"])):
            cold += ["buffer_load_dword v9, v8, s[8:11], s41 offen", "s_add_u32 s41, s41, 8192", "buffer_load_dword v9, v8, s[8:11], s42 offen", "s_add_u32 s42, s42, 8192"]
        cold += [f"{Lq}:"] + ["s_barrier"] * 6 + [f"s_branch {L_join}"]
        a.cold.append("\n".join(cold))
        def short():
            a.vm = 0
            tp2 = TokPipe(a, TOK, NT, 32, 34)
            sched2 = [(ks, f) for ks in range(32) for f in range(2)]
            fp2 = FragPipe(a, FR, D, [lds_win(G[ks // 4].lds * KB + ((ks % 4) * 6 + f) * KB) for ks, f in sched2])
            aux2 = [ld(f"buffer_load_dwordx4 {R(ST+4*q)}, v{vL16}, s[8:11], s35 offen offset:{1024*q} sc1") for q in range(4)]
            aux2 += [ld(f"buffer_load_dwordx2 v[{CSO+4*gu}:{CSO+4*gu+1}], v{TMP+9}, s[8:11], s{36+gu} offen sc1") for gu in range(2)]
            gemm_loop(a, fp2, tp2, sched2, set(range(8, 49, 8)), em, tok0=8, aux=aux2, tok_at=set(range(0, 64, 2)),
                      fills={33: lambda: a.capture(lambda: fill_fn(2))}, per_gap=4)
            a.e("s_nop 11")
            epi(0, True)
            signal_wave(a, 4)
            Lq = a.label("gq"); Lq0 = a.label("gq0")
            a.e(f"""
            v_lshlrev_b32 v8, 7, v{vL}
            s_and_b32 s40, s{sJ}, 1
            s_lshl_b32 s40, s40, 2
            s_add_u32 s40, s40, s{sW}
            s_cmp_eq_u32 s{sL}, 0
            s_cbranch_scc1 {Lq0}
            s_mul_i32 s41, s40, {172*KB}
            s_add_u32 s41, s41, {WPD + 64*KB + 8192*int(OPT['gd'])}
            """)
            for i in range(int(OPT["gd2"])):
                a.e("buffer_load_dword v9, v8, s[8:11], s41 offen\ns_add_u32 s41, s41, 8192")
            a.e(f"s_branch {Lq}\n{Lq0}:\ns_mul_i32 s41, s40, {192*KB}\ns_add_u32 s41, s41, {WPQ + 8192*int(OPT['gq'])}\ns_add_u32 s42, s41, {96*KB}")
            for i in range(int(OPT["gq2"])):
                a.e("buffer_load_dword v9, v8, s[8:11], s41 offen\ns_add_u32 s41, s41, 8192\nbuffer_load_dword v9, v8, s[8:11], s42 offen\ns_add_u32 s42, s42, 8192")
            a.e(f"{Lq}:")
        if OPT["gshort"]:
            a.cold.append(f"{L_short}:\n" + "\n".join(a.capture(short)) + f"\ns_branch {L_join}")
        a.stamp(12)
        a.e(f"s_lshr_b32 s40, s{sW}, 1\ns_lshl_b32 s41, s40, 10\ns_mul_i32 s40, s40, 3072\ns_add_u32 s41, s41, 1024")
        for j in range(4):
            a.e(f"s_add_u32 s46, s{sWD}, {(9*16 + j*4)*KB}\ns_add_u32 s47, s46, s41\ns_add_u32 s46, s46, s40")
            a.vmem(f"buffer_load_dwordx4 {R(192+8*j)}, v{vL16}, s[8:11], s47 offen")
            a.vmem(f"buffer_load_dwordx4 {R(192+8*j+4)}, v{vL16}, s[8:11], s46 offen")
        epi(2, True)
        L_done = a.label("gdone")
        a.e(f"{L_done}:")
        a.bar()
        signal_wave(a, 4, 13)
    def load():
        only_wave0(a, lambda: dep_half_poll(a, sJ, 3), int(OPT['pw']))
        loader_stage(a, need + [None], issue)
    by_role(a, comp, load)

def gen_mega(a):
    name = NAME + "_kernel"
    kernel_begin(a, name)
    L_end = a.label("end")
    a.e(f"""
    s_cmp_ge_u32 s2, 256
    s_cbranch_scc1 {L_end}
    s_load_dwordx16 s[36:51], s[0:1], 0
    s_load_dwordx4 s[52:55], s[0:1], {A_DBG}
    s_getpc_b64 s[60:61]
L_pc0:
    s_lshr_b32 s{sJ}, s2, 3
    s_lshl_b32 s62, s{sJ}, 11
    s_min_u32 s62, s62, L_code_end - L_pc0 - 2048
    v_lshl_add_u32 v2, v0, 2, s62
    global_load_dword v240, v2, s[60:61]
    v_and_b32 v{vL}, 63, v0
    v_lshrrev_b32 v2, 6, v0
    v_lshlrev_b32 v{vL16}, 4, v{vL}
    v_readfirstlane_b32 s{sW}, v2
    s_getreg_b32 s70, hwreg(HW_REG_XCC_ID, 0, 4)
    s_mov_b32 s{sMODE}, 0
    s_mov_b32 s{sREDO}, 0
    s_mov_b32 s{sL}, 0
    s_and_b32 s{sG}, s70, 7
    s_and_b32 s{sLW}, s{sW}, 3
    s_lshl_b32 s{sLW}, s{sLW}, 10
    s_mov_b32 s58, {2*MB}
    s_mov_b32 s59, 0x00020000
    s_mov_b32 s82, {512*3072}
    s_mov_b32 s83, 0x00020000
    s_waitcnt lgkmcnt(0)
    s_mov_b32 s56, s36
    s_mov_b32 s57, s37
    s_mov_b32 s80, s38
    s_mov_b32 s81, s39
    """)
    if OPT["stamp"]:
        a.e("v_mov_b32 v255, 0")
    a.stamp(0)
    if OPT["stamp"]:
        a.e("s_memrealtime s[90:91]\ns_waitcnt lgkmcnt(0)\nv_writelane_b32 v255, s90, 62")
    Q = [Chunk(sWQ, c * 12 * KB, 12, l) for c, l in enumerate([0, 12, 24, 36, 48, 60, 72, 84])]
    WOc = [Chunk(sWO, c * 16 * KB, 16, 16 * c) for c in range(4)]
    G = [Chunk(sWG, c * 24 * KB, 24, l) for c, l in enumerate([92, 116, 68, 0, 24, 92, 116, 68])]
    Dn = [Chunk(sWD, c * 16 * KB, 16 if c < 10 else 12, l) for c, l in enumerate([48, 0, 16, 32, 96, 64, 80, 112, 140, 0, 128])]
    def init():
        L5 = a.label("p5")
        a.e(f"s_cmp_lg_u32 s{sREDO}, 0\ns_cbranch_scc1 {L5}")
        srd(a, 8, 54, WS_USED)
        if int(OPT['wsoff']): a.e(f"s_add_u32 s8, s8, {int(OPT['wsoff'])*MB}\ns_addc_u32 s9, s9, 0")
        srd(a, 12, 50, 2 * MB)
        srd(a, 84, 52, 256)
        a.e(f"""
        v_add_u32 v{vW1}, 0x10000, v{vL16}
        v_add_u32 v{vW2}, 0x20000, v{vL16}
        v_lshlrev_b32 v{vL4}, 2, v{vL}
        v_mov_b32 v{vZ}, 0
        s_mov_b32 s{sLAY}, 0
        s_mov_b32 s{sFB}, 1
        s_lshl_b32 s{sW10}, s{sW}, 10
        v_mov_b32 v{vCN}, {CNT}
        v_lshlrev_b32 v{vL32}, 5, v{vL}
        s_lshr_b32 s60, s{sLW}, 8
        v_mov_b32 v{vWF}, s60
        s_mov_b32 s{sCNT}, 0
        s_lshl_b32 s71, s{sG}, 5
        s_cmp_lg_u32 s{sW}, 0
        s_cbranch_scc1 {L5}
        ds_write_b32 v{vCN}, v{vZ}
        ds_write_b32 v{vCN}, v{vZ} offset:4
        s_and_b32 s72, s2, 127
        s_lshl_b32 s72, s72, 7
        s_add_u32 s72, s72, {FLG}
        s_mov_b32 exec_hi, 0
        buffer_store_dword v{vZ}, v{vL4}, s[8:11], s72 offen sc1
        s_mov_b64 exec, -1
{L5}:
        """)
    def warm():
        Lw = a.label("wm")
        a.e(f"""
        s_or_b32 s60, s{sW}, s{sREDO}
        s_cmp_lg_u32 s60, 0
        s_cbranch_scc1 {Lw}
        s_lshl_b32 s72, 1, s{sJ}
        s_lshr_b32 s73, s70, 3
        s_cmp_lg_u32 s73, 0
        s_cselect_b32 s73, 0x01000000, 0
        s_or_b32 s73, s73, 0x100
        v_mov_b32 v200, s72
        v_mov_b32 v201, s73
        s_mov_b64 exec, 1
        s_waitcnt vmcnt(2)
        buffer_atomic_add_x2 v[200:201], v{vZ}, s[84:87], s71 offen sc0 sc1
        s_mov_b64 exec, -1
{Lw}:
        """)
    def ticket():
        Lw = a.label("tp")
        a.e(f"""
        s_or_b32 s60, s{sW}, s{sREDO}
        s_cmp_lg_u32 s60, 0
        s_cbranch_scc1 {Lw}
        s_waitcnt vmcnt(0)
        v_bfe_u32 v2, v201, 8, 16
        v_mov_b32 v200, {XCH}
        s_mov_b64 exec, 1
        ds_write_b32 v200, v2 offset:4
        s_mov_b64 exec, -1
        s_waitcnt lgkmcnt(0)
{Lw}:
        """)
    def roles():
        init()
        a.e(f"""
        s_lshl_b32 s{sGFL}, s{sG}, 10
        s_add_u32 s{sGFL}, s{sGFL}, {GF}
        s_lshl_b32 s{sMYF}, s{sJ}, 5
        s_add_u32 s{sMYF}, s{sMYF}, s{sGFL}
        s_lshr_b32 s76, s{sJ}, 1
        s_mul_i32 s{sWQ}, s76, {96*KB}
        s_add_u32 s{sWQ}, s{sWQ}, {WPQ}
        s_mov_b32 s{sLB}, 0
        s_mov_b32 s{sQB}, {QF0}
        s_mul_i32 s{sXN}, s{sMODE}, {XA + LAY - XB}
        s_add_u32 s{sXN}, s{sXN}, {XB}
        s_mul_i32 s{sSN}, s{sMODE}, {STA + LAY - STB}
        s_add_u32 s{sSN}, s{sSN}, {STB}
        s_min_u32 s76, s76, 14
        s_mul_i32 s{sWG}, s76, {192*KB}
        s_add_u32 s{sWG}, s{sWG}, {WPG}
        s_lshr_b32 s76, s{sJ}, 2
        s_lshl_b32 s{sWO}, s76, 16
        s_add_u32 s{sWO}, s{sWO}, {WPO}
        s_mul_i32 s{sWD}, s76, {172*KB}
        s_add_u32 s{sWD}, s{sWD}, {WPD}
        """)
    L_roles = a.label("roles")
    a.e(f"{L_roles}:")
    stage_qkv0(a, L_roles, warm, ticket, roles)
    L_layer = a.label("layer")
    a.e(f"{L_layer}:")
    def pf_attn():
        a.e(f"""
        v_lshlrev_b32 v164, 7, v{vL}
        s_and_b32 s64, s{sJ}, 1
        s_mul_i32 s64, s64, {32*KB*int(OPT['pfn'])}
        s_add_u32 s64, s64, s{sWG}
        s_mul_i32 s65, s{sLW}, {8*int(OPT['pfn'])}
        s_add_u32 s64, s64, s65
        s_add_u32 s65, s64, 8192
        s_add_u32 s66, s64, 16384
        """)
        for i in range(int(OPT['pfn'])):
            l2_prefetch(a, 165, 164, 64 + i)
    def pf(sbase, share_mask, share_bytes, off, n):
        def fn():
            a.e(f"""
            s_and_b32 s64, s{sJ}, {share_mask}
            s_mul_i32 s64, s64, {share_bytes}
            s_mul_i32 s65, s{sLW}, {share_bytes // 4 // KB}
            s_add_u32 s64, s64, s65
            s_add_u32 s64, s64, s{sbase}
            s_add_u32 s64, s64, {off}
            """)
            for i in range(n):
                a.vmem(f"buffer_load_dwordx4 v[8:11], v{vL16}, s[8:11], s64 offen offset:{i*KB}")
        return fn
    pfd = [pf(sWD, 3, 24 * KB, 80 * KB + i * 2 * KB, 2) for i in range(3)]
    pfq = [(pf(sWQ, 1, 48 * KB, i * 3 * KB, 3),) for i in range(4)]
    pf9 = pf(sWD, 3, 4 * KB, 144 * KB, 1)
    pfD = [pf(sWD, 3, 44 * KB, i * 4 * KB, 4 if i < 2 else 3) for i in range(3)]
    if not OPT["pfd"]: pfd = [lambda: None] * 3
    if not OPT["pfq"]: pfq = [(lambda: None,)] * 4
    stage_attn(a, WOc, [G[0]], pf_attn)
    a.e("L_wo_start:")
    stage_proj(a, WOc, [], [None], 16, OF, 32768, XA, XB, STB, "all", 2, 3, ({0: [G[1], G[2]] + pfq[:int(OPT['wq'])], 2: [G[3], G[4]]} if OPT['g34'] == 'w' else {0: [G[1], G[2]]}), False, 8)
    wh = lambda: warm_h(a)
    last = [Dn[4], Dn[5], Dn[6], Dn[7], Dn[10]]
    plans = {
        'a': {2: [G[5]], 3: [G[6], Dn[8]], 4: [G[7], Dn[0], pfq[0]], 5: [Dn[1], pf9, pfq[1]], 6: [wh, Dn[2], Dn[3], pfq[2], pfq[3]], 7: last},
        'b': {2: [G[5], pfq[0]], 3: [G[6], Dn[8], pfq[1]], 4: [G[7], Dn[0], pfq[2]], 5: [Dn[1], pf9, pfq[3]], 6: [wh, Dn[2], Dn[3]], 7: last},
        'c': {2: [G[5]], 3: [G[6], Dn[8]], 4: [G[7], Dn[0]], 5: [Dn[1], pf9], 6: [wh, Dn[2], Dn[3]], 7: last + [(lambda: None,)]},
        'd': {2: [G[5]], 3: [G[6], Dn[8]], 4: [G[7], Dn[0], pfq[0], pfq[1]], 5: [wh, Dn[1], pf9, pfq[2], pfq[3]], 6: [Dn[2], Dn[3]], 7: last},
    }
    pl_ = dict(plans[OPT['gp']])
    if OPT['g34'] == 'a': pl_[0] = [G[3], G[4]]
    if OPT['g34'] == 'b': pl_[0] = [G[3]]; pl_[1] = [G[4]]
    if OPT['g34'] == 'c': pl_[1] = [G[3], G[4]]
    if OPT['pace'] != 'x':
        for k_ in list(pl_):
            if k_ <= 4:
                pl_[k_] = [(lambda c=c: dma_chunk(a, c, pace=int(OPT['pace']))) if isinstance(c, Chunk) and c in G else c for c in pl_[k_]]
    stage_gu(a, G, G[:6] + [G[6:8]], pl_)
    stage_proj(a, Dn, [3, int(OPT['qb'])], ([Dn[:9] + [Dn[10]], None, None] if not OPT['dneed'] else [Dn[:4] + [Dn[8]], Dn[4:8] + [Dn[10]], None]), 43, HF, 86 * KB, XB, XA + LAY, STA + LAY, "gu", 4, 5,
               {2: [(c,) for c in Q[:4]], 4: [(c,) for c in Q[4:]]}, True, 14)
    L_exit = a.label("exit")
    a.e(f"""
    s_cmp_lg_u32 s{sL}, 0
    s_cbranch_scc1 {L_exit}
    """)
    a.e(f"""
    s_mov_b32 s{sL}, 1
    s_mov_b32 s{sLAY}, {LAY}
    s_mul_i32 s{sLB}, s{sMODE}, {LAY}
    s_mul_i32 s{sQB}, s{sMODE}, {QF1 - HF}
    s_add_u32 s{sQB}, s{sQB}, {HF}
    s_add_u32 s{sFB}, s{sFB}, 5
    """)
    stage_qkv(a, Q)
    a.e(f"s_branch {L_layer}\n{L_exit}:")
    if OPT["stamp"]:
        a.stamp(17)
        a.e(f"""
        s_lshl_b32 s92, s2, 3
        s_add_u32 s92, s92, s{sW}
        s_lshl_b32 s92, s92, 8
        s_add_u32 s92, s92, {DBG}
        s_memrealtime s[90:91]
        s_waitcnt lgkmcnt(0)
        v_writelane_b32 v255, s90, 63
        v_writelane_b32 v255, s{sG}, 30
        v_writelane_b32 v255, s{sJ}, 31
        v_writelane_b32 v255, s{sMODE}, 29
        buffer_store_dword v255, v{vL4}, s[8:11], s92 offen
        """)
    if OPT["hstamp"]:
        Lh = a.label("hs")
        a.e(f"""
        s_cmp_lg_u32 s2, 77
        s_cbranch_scc1 {Lh}
        s_cmp_lg_u32 s{sW}, 0
        s_cbranch_scc1 {Lh}
        s_load_dwordx2 s[84:85], s[0:1], {A_DBG}
        s_mov_b32 s86, 256
        s_mov_b32 s87, 0x00020000
        v_readlane_b32 s60, v255, 0
        v_readlane_b32 s61, v255, 62
        v_readlane_b32 s62, v255, 63
        s_sub_u32 s62, s62, s61
        s_waitcnt lgkmcnt(0)
        v_mov_b32 v2, s62
        s_mov_b64 exec, 1
        buffer_store_dword v2, v{vZ}, s[84:87], 0 offen offset:8
        """)
        for k, sl in enumerate([1, 3, 5, 7, 16, 32+3, 32+5, 32+7, 32+10, 32+13, 32+17]):
            dw = [3, 4, 5, 6, 7, 10, 11, 12, 13, 14, 15][k]
            a.e(f"v_readlane_b32 s61, v255, {sl}\ns_sub_u32 s61, s61, s60\nv_mov_b32 v2, s61\nbuffer_store_dword v2, v{vZ}, s[84:87], 0 offen offset:{4*dw}\ns_nop 1")
        a.e(f"{Lh}:")
    a.e(f"{L_end}:\ns_endpgm")
    for c in a.cold:
        a.e(c)
    a.e("L_code_end:")
    return kd(name, 256, 100)

DOC = '''; Persistent single-launch implementation (one 512-thread workgroup per CU, all 256 co-resident).
;  * 8 groups of 32 workgroups; group = 256 rows.  Roles are (die id read from the hardware register, member index).
;    so die-local hand-offs are only used between workgroups that really share a die.  K/V and repacked weights always
;  * LayerNorm is applied algebraically: rstd * (x @ W - mean * colsum(W)), mean/colsum as an extra hi/lo-split MFMA step.
'''
def build():
    a = Asm()
    k2 = gen_mega(a)
    hdr = DOC + f"; @launch grid=(256,1,1) block=(512,1,1) lds={LDS_BYTES}\n" + '.amdgcn_target "amdgcn-amd-amdhsa--gfx950"\n.text\n'
    return hdr + a.text() + '.section .rodata,"a"\n' + k2

if __name__ == "__main__":
    args = sys.argv[1:]
    out = f"cdna_kernels/{NAME}.s"
    for x in args:
        if x.startswith("--"):
            k, _, v = x[2:].partition("=")
            OPT[k] = v if k in ("force_mode", "wb", "pace", "q0e", "q0up", "wq", "coop") else (v == "" or v == "1") if v in ("", "0", "1") else v
        else:
            out = x
    open(out, "w").write(build())
```

```python
import sys, struct

NAME = "interleave_layers__mha_block__glu_gated_bilinear__prompt"
MB = 1 << 20
KB = 1024
XA = 0
XB = 2 * MB
OF = 4 * MB
QF = 6 * MB
KV = 8 * MB
HF = 12 * MB
STA = 18 * MB
STB = 18 * MB + 256 * KB
LAY = 20 * MB
WPQ = 56 * MB
WPQ_G = 1536 * KB
WPO = 46 * MB
WPG = 47 * MB
WPD = 50 * MB
CSPQ = 44 * MB
CSPQ_G = 24 * KB
CSPG = 44 * MB + 256 * KB
CSPU = CSPG + 24 * KB
FLG = 52 * MB + 64 * KB
GF = FLG
QFL = FLG + 8192
BGF = FLG + 8192 + 4096
FLG_BYTES = 8192
DBG = 53 * MB
QF0 = 68 * MB
QF1 = 74 * MB
WS_USED = 80 * MB
A_X, A_WQKV, A_WO, A_BX, A_WG, A_WU, A_WD, A_OUT, A_DBG, A_WS = [8 * i for i in range(10)]

OPT = dict(wold='o', q0d='20', q0g='5', wq='0', bgs='b', pw_on=True, dneed=True, dw0=True, coop='x', q0e='x', pwkv=False, pwkv0=False, pace='x', g34='w', gpg='2', gpt='4', gfg='2', gD='6', gTL='8', qpg='4', qD='4', tlb=False, wsoff='0', wb='0', gshort=False, gq2='2', gd2='2', bg30=False, lf=True, codepf2=True, pw='7', gidle=True, gq='3', gd='6', pfn='3', l0o='a', cswarm=False, gp='c', pf0=True, pf1=True, pwph='7', wtok0='12', codepf=True, qb='9', bgph='46', bgt='23', aprio='no', guv='B', qv='A', hstamps=False, q0up='2', q0la='7', qstamp=False, hstamp=False, bgnt=False, astamp=False, force_mode=0, lprio=True, x_nod89=False, x_nobs=False, dstamp=False, ptok0="12", pnt="20", qtok0="10", pD="6", pfplan="g", stamp=False, force_slow=False, vmask=True, ones_all=False, pfa="128", pfa_t="21", pfq=True, pfd=True, kvnt=False)

def f32(x):
    return hex(struct.unpack("<I", struct.pack("<f", x))[0])

class Asm:
    def __init__(self):
        self.lines = []
        self.vm = 0
        self.uid = 0
        self.nbar = 0
        self.nstamp = 0
        self.stamp_names = []
        self.cold = []
    def e(self, s):
        for l in s.strip("\n").split("\n"):
            l = l.strip()
            if not l:
                continue
            self.lines.append(("" if l.endswith(":") else "    ") + l)
    def vmem(self, s):
        self.e(s)
        self.vm += 1
        return self.vm - 1
    def wait_vm(self, idx):
        n = self.vm - idx - 1
        assert n >= 0
        self.e(f"s_waitcnt vmcnt({min(n, 63)})")
    def bar(self):
        self.e("s_barrier")
        self.nbar += 1
    def label(self, base):
        self.uid += 1
        return f"L_{base}_{self.uid}"
    def stamp(self, idx):
        if OPT["stamp"]:
            self.e(f"s_memtime s[90:91]\ns_waitcnt lgkmcnt(0)\ns_lshl_b32 s92, s24, 5\ns_add_u32 m0, s92, {idx}\ns_nop 3\nv_writelane_b32 v255, s90, m0")
    def capture(self, fn):
        save, vm, nb = self.lines, self.vm, self.nbar
        self.lines = []
        fn()
        out = [l.strip() for l in self.lines]
        self.lines, self.vm, self.nbar = save, vm, nb
        return out
    def group(self, fn):
        n0 = len(self.lines)
        fn()
        g = "\n".join(l.strip() for l in self.lines[n0:])
        del self.lines[n0:]
        self.lines.append("@G" + g)
    def rstamp(self, idx):
        if OPT["stamp"]:
            self.e(f"s_memrealtime s[90:91]\ns_waitcnt lgkmcnt(0)\ns_lshl_b32 s92, s24, 5\ns_add_u32 m0, s92, {idx}\ns_nop 3\nv_writelane_b32 v255, s90, m0")
    def text(self):
        return "\n".join(self.lines) + "\n"

def srd(a, d, ptr, size):
    a.e(f"s_mov_b32 s{d}, s{ptr}\ns_mov_b32 s{d+1}, s{ptr+1}\ns_mov_b32 s{d+2}, {hex(size)}\ns_mov_b32 s{d+3}, 0x00020000")

def kernel_begin(a, name):
    a.e(f".globl {name}\n.p2align 8\n.type {name},@function\n{name}:")
    a.vm = 0

def kd(name, vgpr, sgpr=96):
    acc = (vgpr + 3) // 4 * 4
    return f""".p2align 6
.amdhsa_kernel {name}
  .amdhsa_next_free_vgpr {vgpr}
  .amdhsa_next_free_sgpr {sgpr}
  .amdhsa_accum_offset {acc}
  .amdhsa_group_segment_fixed_size 0
  .amdhsa_kernarg_size 80
  .amdhsa_user_sgpr_count 2
  .amdhsa_user_sgpr_kernarg_segment_ptr 1
  .amdhsa_system_sgpr_workgroup_id_x 1
.end_amdhsa_kernel
"""

def R(b, n=4):
    return f"v[{b}:{b+n-1}]"

def mfma(d, A, B, C=None):
    c = R(d, 16) if C is None else C
    return f"v_mfma_f32_32x32x16_bf16 {R(d,16)}, {R(A)}, {R(B)}, {c}"

def tr_addr(a, vdst, vL, tmp, rs=6):
    a.e(f"""
    v_lshrrev_b32 v{tmp}, 5, v{vL}
    v_lshlrev_b32 v{vdst}, {rs+2}, v{tmp}
    v_bfe_u32 v{tmp}, v{vL}, 2, 2
    v_lshl_add_u32 v{vdst}, v{tmp}, {rs}, v{vdst}
    v_bfe_u32 v{tmp}, v{vL}, 4, 1
    v_lshl_add_u32 v{vdst}, v{tmp}, 5, v{vdst}
    v_and_b32 v{tmp}, 3, v{vL}
    v_lshl_add_u32 v{vdst}, v{tmp}, 3, v{vdst}
    """)

def stats_compute(a, P, nP, tmp, vS, vQ):
    a.e(f"v_mov_b32 v{vS}, 0\nv_mov_b32 v{vQ}, 0")
    for i in range(nP):
        a.e(f"""
        v_lshlrev_b32 v{tmp}, 16, v{P+i}
        v_and_b32 v{tmp+1}, 0xffff0000, v{P+i}
        v_add_f32 v{vS}, v{vS}, v{tmp}
        v_fmac_f32 v{vQ}, v{tmp}, v{tmp}
        v_add_f32 v{vS}, v{vS}, v{tmp+1}
        v_fmac_f32 v{vQ}, v{tmp+1}, v{tmp+1}
        """)
    a.e(f"""
    s_nop 1
    v_permlane32_swap_b32 v{vS}, v{vQ}
    s_nop 1
    v_add_f32 v{vS}, v{vS}, v{vQ}
    """)

def stats_f32(a, X, vS, vQ):
    a.e(f"v_pk_add_f32 v[{vS}:{vS+1}], v[{X}:{X+1}], v[{X+2}:{X+3}]")
    a.e(f"v_pk_mul_f32 v[{vQ}:{vQ+1}], v[{X}:{X+1}], v[{X}:{X+1}]")
    for r in range(1, 8):
        if r >= 2:
            a.e(f"v_pk_add_f32 v[{vS}:{vS+1}], v[{vS}:{vS+1}], v[{X+2*r}:{X+2*r+1}]")
        a.e(f"v_pk_fma_f32 v[{vQ}:{vQ+1}], v[{X+2*r}:{X+2*r+1}], v[{X+2*r}:{X+2*r+1}], v[{vQ}:{vQ+1}]")
    a.e(f"""
    v_add_f32 v{vS}, v{vS}, v{vS+1}
    v_add_f32 v{vQ}, v{vQ}, v{vQ+1}
    s_nop 1
    v_permlane32_swap_b32 v{vS}, v{vQ}
    s_nop 1
    v_add_f32 v{vS}, v{vS}, v{vQ}
    """)

def stats_finish(a, ST, vMean, vRstd, tmp, adds=True):
    for w in ((8, 4, 2, 1) if adds else ()):
        for i in range(w):
            a.e(f"v_add_f32 v{ST+i}, v{ST+i}, v{ST+i+w}")
    a.e(f"""
    v_mov_b32 v{tmp}, v{ST}
    s_nop 1
    v_permlane32_swap_b32 v{ST}, v{tmp}
    s_nop 1
    v_mul_f32 v{vMean}, {f32(-1.0/512)}, v{ST}
    v_mul_f32 v{tmp}, {f32(1.0/512)}, v{tmp}
    v_fma_f32 v{tmp}, -v{vMean}, v{vMean}, v{tmp}
    v_max_f32 v{tmp}, 0, v{tmp}
    v_add_f32 v{tmp}, {f32(1e-5)}, v{tmp}
    v_rsq_f32 v{vRstd}, v{tmp}
    s_nop 0
    """)

def split_hilo(a, vsrc, vdst, tmp, mode):
    a.e(f"""
    v_cvt_pk_bf16_f32 v{vdst}, v{vsrc}, v{vsrc}
    v_and_b32 v{tmp}, 0xffff0000, v{vdst}
    v_sub_f32 v{tmp}, v{vsrc}, v{tmp}
    """)
    if mode == "tok":
        a.e(f"v_mov_b32 v{vdst+1}, v{vdst}\nv_cvt_pk_bf16_f32 v{vdst+2}, v{tmp}, v{tmp}\nv_mov_b32 v{vdst+3}, 0")
    elif mode == "hl":
        a.e(f"v_cvt_pk_bf16_f32 v{vdst}, v{vsrc}, v{tmp}\nv_mov_b32 v{vdst+1}, 0\nv_mov_b32 v{vdst+2}, 0\nv_mov_b32 v{vdst+3}, 0")
    else:
        a.e(f"v_cvt_pk_bf16_f32 v{vdst}, v{vsrc}, v{tmp}")

sW, sG, sJ, sREDO, sQV, sMODE, sLAY, sL = 16, 18, 19, 20, 21, 22, 23, 24
sFB = 25
sWQ, sWO, sWG, sWD = 26, 27, 28, 29
sLW = 30
sGFL = 31
sW10 = 17
sLB, sXN, sSN, sQB = 3, 79, 88, 77
sMYF = 21
vCN = 0
vL32, vWF = 254, 253
RS = 236
PR = 244
vL, vL16, vW1, vW2, vL4, vZ = 1, 3, 4, 5, 6, 7
XCH = 140 * KB
LDS_BYTES = 160 * KB

class Chunk:
    def __init__(self, sbase, goff, nblk, lds):
        self.sbase, self.goff, self.nblk, self.lds = sbase, goff, nblk, lds
        self.last = None

def dma_chunk(a, ch, nw=4, pace=None):
    nb = ch.nblk // nw
    assert nb * nw == ch.nblk
    sw = sLW if nw == 4 else sW10
    a.e(f"s_mul_i32 s64, s{sw}, {nb}\ns_add_u32 s65, s64, s{ch.sbase}")
    for b0 in range(0, nb, 4):
        a.e(f"s_add_u32 m0, s64, {ch.lds*KB + b0*KB}\ns_add_u32 s66, s65, {ch.goff + b0*KB}")
        for b in range(b0, min(nb, b0 + 4)):
            ch.last = a.vmem(f"buffer_load_dwordx4 v{vL16}, s[8:11], s66 offen offset:{(b-b0)*KB} lds")
            if pace is not None: a.e(f"s_waitcnt vmcnt({pace})")

def l2_prefetch(a, vdst, vaddr, soff):
    return a.vmem(f"buffer_load_dword v{vdst}, v{vaddr}, s[8:11], s{soff} offen")

def lds_win(off, bases=(vL16, vW1, vW2)):
    return bases[off >> 16], off & 0xffff

class FragPipe:
    def __init__(self, a, base, D, frags):
        self.a, self.base, self.D, self.frags = a, base, D, frags
        self.issued = 0
        self.ops = 0
        self.cum = []
        self.slots = []
    def slot(self, g):
        return self.slots[g]
    def issue(self):
        g = self.issued
        if g >= len(self.frags):
            return
        va, off = self.frags[g]
        if va == "reg":
            self.slots.append(off)
        else:
            self.slots.append(self.base + 4 * (g % self.D))
            self.a.e(f"ds_read_b128 {R(self.slots[g])}, v{va} offset:{off}")
            self.ops += 1
        self.cum.append(self.ops)
        self.issued += 1
    def wait(self, g):
        if self.frags[g][0] == "reg" and (g == 0 or self.frags[g - 1][0] == "reg"):
            return
        self.a.e(f"s_waitcnt lgkmcnt({self.ops - self.cum[g]})")

def stores(a, lst):
    L1 = a.label("sts"); L2 = a.label("std")
    a.e(f"s_cmp_lg_u32 s{sMODE}, 0\ns_cbranch_scc1 {L1}")
    for s in lst:
        a.vmem(s)
    a.e(f"{L2}:")
    a.cold.append(f"{L1}:\n" + "\n".join(s + " sc1" for s in lst) + f"\ns_branch {L2}")

def poll(a, soff, mask_lo, starget, wide=True):
    Lp = a.label("poll"); Ld = a.label("polld")
    def ld(r):
        if wide == 8:
            q = PR if r == PR else 224
            return f"buffer_load_dwordx4 {R(q)}, v{vL32}, s[8:11], s{soff} offen sc1\nbuffer_load_dwordx4 {R(q+4)}, v{vL32}, s[8:11], s{soff} offen offset:16 sc1"
        if wide:
            return f"buffer_load_dwordx4 {R(r)}, v{vL32}, s[8:11], s{soff} offen sc1"
        return f"buffer_load_dword v{r}, v{vL4}, s[8:11], s{soff} offen sc1"
    def chk(r):
        if wide == 8:
            q = PR if r == PR else 224
            return f"v_min3_u32 v{q}, v{q}, v{q+1}, v{q+2}\nv_min3_u32 v{q+3}, v{q+3}, v{q+4}, v{q+5}\nv_min3_u32 v{q}, v{q}, v{q+6}, v{q+7}\nv_min_u32 v{q}, v{q}, v{q+3}\nv_cmp_gt_u32 vcc, s{starget}, v{q}"
        pre = f"v_min3_u32 v{r}, v{r}, v{r+1}, v{r+2}\nv_min_u32 v{r}, v{r}, v{r+3}\n" if wide else ""
        return pre + f"v_cmp_gt_u32 vcc, s{starget}, v{r}"
    a.e(f"""
    s_mov_b32 exec_lo, {mask_lo}
    s_mov_b32 exec_hi, 0
    s_mov_b32 s60, 0
    {ld(PR)}
{Lp}:
    {ld(PR+4)}
    s_waitcnt vmcnt({2 if wide == 8 else 1})
    {chk(PR)}
    s_add_u32 s60, s60, 1
    s_cmp_gt_u32 s60, 0x4000
    s_cbranch_vccz {Ld}
    {ld(PR)}
    s_waitcnt vmcnt({2 if wide == 8 else 1})
    {chk(PR+4)}
    s_cbranch_scc1 {Ld}
    s_nop 0
    s_cbranch_vccnz {Lp}
{Ld}:
    s_mov_b64 exec, -1
    """)

def signal_wave(a, val_off, stamp=None):
    a.e(f"s_add_u32 s61, s{sFB}, {val_off}\nv_mov_b32 v2, s61\ns_mov_b64 exec, 1\ns_waitcnt vmcnt(0)")
    if stamp is not None: a.stamp(stamp)
    vm = a.vm
    stores(a, [f"buffer_store_dword v2, v{vWF}, s[8:11], s{sMYF} offen"])
    a.vm = vm
    a.e("s_mov_b64 exec, -1")

def signal_group(a, val_off):
    a.e(f"s_add_u32 s61, s{sFB}, {val_off}\ns_mov_b64 exec, 15\nv_mov_b32 v2, s61")
    stores(a, [f"buffer_store_dword v2, v{vL4}, s[8:11], s{sMYF} offen"])
    a.e("s_mov_b64 exec, -1")

CNT = LDS_BYTES - 16
sCNT = 78
def arrive(a, n, sig, second=False):
    L = a.label("arr")
    a.e(f"""
    v_mov_b32 v2, 1
    s_mov_b64 exec, 1
    ds_add_rtn_u32 v2, v{vCN}, v2{' offset:4' if second else ''}
    {f's_mov_b32 s61, {n-1}' if second else f's_add_u32 s{sCNT}, s{sCNT}, {n}'}
    {'' if second else f's_sub_u32 s61, s{sCNT}, 1'}
    s_waitcnt lgkmcnt(0)
    v_readfirstlane_b32 s62, v2
    s_mov_b64 exec, -1
    s_cmp_lg_u32 s61, s62
    s_cbranch_scc1 {L}
    """)
    vm = a.vm
    sig()
    a.vm = vm
    a.e(f"{L}:")

def by_role_lf(a, comp, load):
    Lc = a.label("cp"); Le = a.label("se")
    a.e(f"s_cmp_lt_u32 s{sW}, 4\ns_cbranch_scc1 {Lc}")
    n0 = a.nbar
    load()
    nl = a.nbar - n0
    vm = a.vm
    a.e(f"s_branch {Le}\n{Lc}:")
    a.nbar = n0
    a.vm = 0
    comp()
    assert a.nbar - n0 == nl
    a.vm = vm
    a.e(f"{Le}:")

def by_role(a, comp, load):
    Ll = a.label("ld"); Le = a.label("se")
    a.e(f"s_cmp_ge_u32 s{sW}, 4\ns_cbranch_scc1 {Ll}")
    n0 = a.nbar
    vm_save = a.vm
    a.vm = 0
    comp()
    nc = a.nbar - n0
    a.e(f"s_branch {Le}\n{Ll}:")
    a.nbar = n0
    a.vm = vm_save
    load()
    assert a.nbar - n0 == nc, (a.nbar - n0, nc)
    a.e(f"{Le}:")

def only_wave0(a, fn, w=0):
    L = a.label("w0")
    a.e(f"s_cmp_lg_u32 s{sW}, {w}\ns_cbranch_scc1 {L}")
    vm = a.vm
    fn()
    a.vm = vm
    a.e(f"{L}:")

def loader_stage(a, need, issue, extra=None, cond_first=False, prio=0):
    def emit(with_cond):
        a.e(f"s_setprio {prio}")
        for k in range(len(need)):
            if extra and k in extra and with_cond:
                extra[k]()
            if need[k]:
                a.wait_vm(max(c.last for c in (need[k] if isinstance(need[k], list) else [need[k]])))
            a.bar()
            for ch in issue.get(k, []):
                if isinstance(ch, tuple):
                    if with_cond:
                        ch[0]() if callable(ch[0]) else dma_chunk(a, ch[0])
                elif callable(ch):
                    ch()
                else:
                    dma_chunk(a, ch)
    if any(isinstance(ch, tuple) for l in issue.values() for ch in l):
        L1 = a.label("ldl"); L2 = a.label("lde")
        vm, nb = a.vm, a.nbar
        a.e(f"s_cmp_lg_u32 s{sL}, 0\ns_cbranch_scc1 {L1}")
        emit(True)
        a.e(f"s_branch {L2}\n{L1}:")
        a.vm, a.nbar = vm, nb
        if cond_first:
            a.vm = 0
            for l in need:
                for ch in (l or []):
                    a.vm += ch.nblk // 4
                    ch.last = a.vm - 1
        emit(False)
        a.e(f"{L2}:")
    else:
        emit(True)

class TokPipe:
    def __init__(self, a, base, NT, n, soff):
        self.a, self.base, self.NT, self.n, self.soff = a, base, NT, n, soff
        self.issued = 0
        self.idx = []
    def slot(self, k):
        return self.base + 4 * (k % self.NT)
    def issue(self):
        k = self.issued
        if k >= self.n:
            return
        self.idx.append(self.a.vmem(f"buffer_load_dwordx4 {R(self.slot(k))}, v{vL16}, s[8:11], s{self.soff} offen offset:{1024*(k%4)} sc1"))
        if k % 4 == 3:
            self.a.e(f"s_add_u32 s{self.soff}, s{self.soff}, 4096")
        self.issued += 1
    def wait(self, k):
        self.a.wait_vm(self.idx[k])

def gemm_loop(a, fp, tp, sched, bars, emit_mfma, tok0=6, aux=None, tok_at=None, fills=None, per_gap=3, stamps=None, aux_late=False, fgrp=2, tgrp=2, aux_at=None):
    def ensure(g):
        if g in bars:
            a.bar()
    for _ in range(tok0):
        tp.issue()
    aux = list(aux or [])
    if not aux_late:
        while aux:
            aux.pop(0)()
    for g in range(fp.D):
        ensure(fp.issued); fp.issue()
    q = []
    waited = -1
    fwaited = -1
    for g, (ks, f) in enumerate(sched):
        if ks > waited:
            waited = min(ks + tgrp - 1, tp.issued - 1)
            tp.wait(waited)
        if stamps and g in stamps: a.stamp(stamps[g])
        if fills and g in fills:
            q += fills[g]()
        if g > fwaited:
            fwaited = min(g + fgrp - 1, fp.issued - 1)
            fp.wait(fwaited)
        emit_mfma(ks, f, fp.slot(g), tp.slot(ks))
        ensure(fp.issued); fp.issue()
        if aux_at and g in aux_at and aux:
            aux.pop(0)()
        elif g in tok_at and tp.issued < min(tp.n, ks + tp.NT - 1):
            tp.issue()
        elif g in tok_at and aux and not aux_at:
            aux.pop(0)()
        else:
            n = 0
            while q and n < (per_gap if isinstance(per_gap, int) else per_gap[0] if g < per_gap[1] else per_gap[2]):
                ins = q.pop(0)
                if ins.startswith("@G"):
                    a.e(ins[2:])
                    a.vm += sum(1 for l in ins[2:].split("\n") if l.startswith("buffer_"))
                    n += 1
                elif ins == "s_barrier":
                    a.bar()
                elif ins.startswith("buffer_"):
                    a.vmem(ins)
                else:
                    a.e(ins)
                if ins.startswith("v_mfma"):
                    break
                n += 1
    assert not aux and not q, (len(aux), len(q))

def csp_addr(a, v, tmp):
    a.e(f"v_and_b32 v{v}, 31, v{vL}\nv_lshlrev_b32 v{v}, 4, v{v}\nv_lshrrev_b32 v{tmp}, 5, v{vL}\nv_lshl_add_u32 v{v}, v{tmp}, 3, v{v}\ns_mov_b32 s59, 0x05040100")


def reduce_cs(a, vaddr, T, sdst, st_fn):
    for w in range(8):
        a.e(f"ds_read_b32 v{T+w}, v{vaddr} offset:{256*w}")
    a.e("s_waitcnt lgkmcnt(0)")
    for w in (4, 2, 1):
        for i in range(w):
            a.e(f"v_add_f32 v{T+i}, v{T+i}, v{T+i+w}")
    split_hilo(a, T, T + 8, T + 9, "one")
    a.e("s_mov_b32 exec_lo, -1\ns_mov_b32 exec_hi, 0")
    st_fn(f"buffer_store_dword v{T+8}, v{vL4}, s[8:11], s{sdst} offen")
    a.e("s_mov_b64 exec, -1")

def wait_l(a, n0, n1):
    L = a.label("wl")
    a.e(f"s_waitcnt vmcnt({n0})\ns_cmp_eq_u32 s{sL}, 0\ns_cbranch_scc1 {L}\ns_waitcnt vmcnt({n1})\n{L}:")

def layer0(a, fn):
    L = a.label("l0")
    a.e(f"s_cmp_lg_u32 s{sL}, 0\ns_cbranch_scc1 {L}")
    vm = a.vm
    fn()
    a.vm = vm
    a.e(f"{L}:")

vBG, vBT, vBS, BF, BO, BD = 188, 189, 190, 192, 208, 212
BGB = 96 * KB
def bg_issue(a, sVW, dma):
    n0 = len(a.lines)
    a.e(f"""
    s_load_dwordx2 s[4:5], s[0:1], {A_WO}
    s_load_dwordx4 s[80:83], s[0:1], {A_WG}
    s_load_dwordx2 s[6:7], s[0:1], {A_WD}
    s_waitcnt lgkmcnt(0)
    """)
    L_o = a.label("bo"); L_d = a.label("bd"); L_go = a.label("bgo"); L_od = a.label("bod")
    def wo_dst(ks, ct, dst, t):
        return f"""
        s_lshl_b32 s{dst}, s{ct}, 16
        s_and_b32 s{t}, s{ks}, 15
        s_lshl_b32 s{t}, s{t}, 12
        s_add_u32 s{dst}, s{dst}, s{t}
        s_lshr_b32 s{t}, s{ks}, 4
        s_lshl_b32 s{t}, s{t}, 11
        s_add_u32 s{dst}, s{dst}, s{t}
        s_add_u32 s{dst}, s{dst}, {WPO}
        """
    def wd_dst(ks, ct, dst, t):
        return f"""
        s_mul_i32 s{dst}, s{ct}, {172*KB}
        s_cmp_ge_u32 s{ks}, 43
        s_cselect_b32 s{t}, {2048 - 43*4096 + (1 << 32)}, 0
        s_add_u32 s{dst}, s{dst}, s{t}
        s_lshl_b32 s{t}, s{ks}, 12
        s_add_u32 s{dst}, s{dst}, s{t}
        s_add_u32 s{dst}, s{dst}, {WPD}
        """
    def gu_dst(v, dst, t):
        return f"""
        s_mul_i32 s{t}, s{v}, 43
        s_lshr_b32 s{t}, s{t}, 7
        s_mul_i32 s{dst}, s{t}, {192*KB - 3*2048}
        s_lshl_b32 s{t}, s{v}, 11
        s_add_u32 s{dst}, s{dst}, s{t}
        s_add_u32 s{dst}, s{dst}, s66
        """
    a.e(f"""
    s_mov_b32 s75, 0x00020000
    s_cmp_lt_u32 s2, 176
    s_cbranch_scc0 {L_o}
    s_cmp_ge_u32 s2, 88
    s_cselect_b32 s72, s82, s80
    s_cselect_b32 s73, s83, s81
    s_cselect_b32 s60, 88, 0
    s_cselect_b32 s66, 1024, 0
    s_cselect_b32 s98, {CSPU - CSPG}, 0
    s_mov_b32 s74, {512*2752}
    s_sub_u32 s60, s2, s60
    s_lshr_b32 s61, s60, 2           ; pair
    s_and_b32 s62, s60, 3            ; quarter
    s_lshl_b32 s63, s62, 3
    s_add_u32 s63, s63, s{sVW}        ; ks
    s_mul_i32 s64, s63, {16*2752}
    s_lshl_b32 s65, s61, 7
    s_add_u32 s64, s64, s65          ; src0
    s_mul_i32 s65, s63, {6*KB}
    s_add_u32 s66, s66, s65
    s_add_u32 s66, s66, {WPG}
    s_lshl_b32 s67, s61, 1           ; v0
    {gu_dst(67, 93, 68)}
    s_add_u32 s67, s67, 1
    {gu_dst(67, 94, 68)}
    s_lshl_b32 s68, s61, 10
    s_add_u32 s98, s98, s68
    s_lshl_b32 s68, s62, 7
    s_add_u32 s98, s98, s68
    s_add_u32 s98, s98, {CSPG}
    s_mov_b32 s95, s93
    s_mov_b32 s96, s94
    s_mov_b32 s97, 2
    s_mov_b32 s69, 2752
    s_branch {L_go}
{L_o}:
    s_sub_u32 s60, s2, 176
    s_lshl_b32 s60, s60, 4
    s_lshl_b32 s61, s{sVW}, 1
    s_add_u32 s60, s60, s61
    s_min_u32 s60, s60, 942
    s_mov_b32 s97, 4
    s_mov_b32 s69, 1024
    s_cmp_lt_u32 s60, 256
    s_cbranch_scc0 {L_d}
    s_mov_b32 s72, s4
    s_mov_b32 s73, s5
    s_mov_b32 s74, {512*1024}
    s_lshr_b32 s61, s60, 5           ; ct
    s_and_b32 s62, s60, 31           ; ks
    s_add_u32 s63, s62, 1
    {wo_dst(62, 61, 93, 68)}
    {wo_dst(63, 61, 95, 68)}
    s_branch {L_od}
{L_d}:
    s_mov_b32 s72, s6
    s_mov_b32 s73, s7
    s_mov_b32 s74, {1376*1024}
    s_sub_u32 s60, s60, 256
    s_mul_i32 s61, s60, 763
    s_lshr_b32 s61, s61, 16          ; ct
    s_mul_i32 s62, s61, 86
    s_sub_u32 s62, s60, s62          ; ks
    s_add_u32 s63, s62, 1
    {wd_dst(62, 61, 93, 68)}
    {wd_dst(63, 61, 95, 68)}
{L_od}:
    s_lshl_b32 s64, s62, 14
    s_lshl_b32 s65, s61, 7
    s_add_u32 s64, s64, s65
    s_add_u32 s94, s93, 1024
    s_add_u32 s96, s95, 1024
{L_go}:
    v_lshrrev_b32 v2, 3, v{vL}
    v_mul_lo_u32 v{vBG}, v2, s69
    v_and_b32 v2, 7, v{vL}
    v_lshl_add_u32 v{vBG}, v2, 4, v{vBG}
    s_lshl_b32 s99, s69, 3           ; 8 rows
    """)
    a.e("s_mov_b32 s89, s64")
    a.e(f"s_lshl_b32 s65, s{sVW}, 12\ns_add_u32 s65, s65, {BGB}")
    tr_addr(a, vBT, vL, 2, 7)
    a.e(f"v_add_u32 v{vBT}, s65, v{vBT}")
    L_q = a.label("bq"); L_e = a.label("be")
    a.e(f"""
    s_mov_b32 m0, s65
    s_add_u32 s66, s89, s99
    buffer_load_dwordx4 v{vBG}, s[72:75], s89 offen lds
    s_add_u32 m0, s65, {KB}
    s_add_u32 s64, s66, s99
    buffer_load_dwordx4 v{vBG}, s[72:75], s66 offen lds
    s_cmp_lt_u32 s2, 96
    s_cbranch_scc1 {L_q}
    s_cmp_eq_u32 s97, 2
    s_cselect_b32 s64, s89, s64
    s_add_u32 m0, s65, {2*KB}
    s_add_u32 s66, s64, s99
    buffer_load_dwordx4 v{vBG}, s[72:75], s64 offen lds
    s_add_u32 m0, s65, {3*KB}
    s_nop 0
    buffer_load_dwordx4 v{vBG}, s[72:75], s66 offen lds
    s_branch {L_e}
{L_q}:
    ; second task: wqkv pair p = id>>2, ks = 8*(id&3) + w
    s_load_dwordx2 s[72:73], s[0:1], {A_WQKV}
    s_mov_b32 s74, {512*3072}
    s_lshr_b32 s61, s2, 2
    s_and_b32 s62, s2, 3
    s_lshl_b32 s62, s62, 3
    s_add_u32 s62, s62, s{sVW}
    s_mul_i32 s63, s62, {16*3072}
    s_lshl_b32 s64, s61, 7
    s_add_u32 s63, s63, s64
    s_add_u32 s64, s63, {8*3072}
    s_and_b32 s66, s61, 7
    s_mul_i32 s95, s66, {192*KB}
    s_mul_i32 s66, s62, 3
    s_lshr_b32 s67, s61, 3
    s_add_u32 s66, s66, s67
    s_lshl_b32 s66, s66, 10
    s_add_u32 s95, s95, s66
    s_add_u32 s95, s95, {WPQ}
    s_add_u32 s96, s95, {96*KB}
    v_lshrrev_b32 v2, 3, v{vL}
    v_mul_u32_u24 v{vBG}, 3072, v2
    v_and_b32 v2, 7, v{vL}
    v_lshl_add_u32 v{vBG}, v2, 4, v{vBG}
    s_add_u32 m0, s65, {2*KB}
    s_waitcnt lgkmcnt(0)
    buffer_load_dwordx4 v{vBG}, s[72:75], s63 offen lds
    s_add_u32 m0, s65, {3*KB}
    s_nop 0
    buffer_load_dwordx4 v{vBG}, s[72:75], s64 offen lds
{L_e}:
    """)
    if not dma:
        keep = [l for l in a.lines[n0:] if " lds" not in l and "s_load" not in l and " m0," not in l]
        del a.lines[n0:]
        a.lines += keep

def bg_pack(a, sVW):
    L_b2 = a.label("b2"); L_bx = a.label("bx")
    for b in range(4):
        o = (b // 2) * 2 * KB + (b % 2) * 64
        a.e(f"ds_read_b64_tr_b16 v[{BF+4*b}:{BF+4*b+1}], v{vBT} offset:{o}\nds_read_b64_tr_b16 v[{BF+4*b+2}:{BF+4*b+3}], v{vBT} offset:{o+1024}")
    for i in range(4):
        a.e(f"v_mov_b32 v{BO+i}, 0x3f803f80")
    a.e(f"""
    s_lshl_b32 s60, s{sVW}, 8
    s_add_u32 s60, s60, {144*KB}
    v_add_u32 v{vBS}, s60, v{vL4}
    s_waitcnt lgkmcnt(0)
    buffer_store_dwordx4 {R(BF)}, v{vL16}, s[8:11], s93 offen sc1
    buffer_store_dwordx4 {R(BF+4)}, v{vL16}, s[8:11], s94 offen sc1
    buffer_store_dwordx4 {R(BF+8)}, v{vL16}, s[8:11], s95 offen sc1
    buffer_store_dwordx4 {R(BF+12)}, v{vL16}, s[8:11], s96 offen sc1
    s_cmp_lg_u32 s97, 2
    s_cbranch_scc1 {L_bx}
    """)
    a.e(mfma(BD, BO, BF, "0"))
    a.e(mfma(172, BO, BF + 4, "0"))
    a.e(f"""
    s_nop 15
    ds_write_b32 v{vBS}, v{BD}
    ds_write_b32 v{vBS}, v172 offset:2048
    s_waitcnt lgkmcnt(0)
{L_bx}:
    """)

def bg_reduce(a):
    L = a.label("br")
    a.e(f"s_cmp_lg_u32 s97, 2\ns_cbranch_scc1 {L}")
    for sub in range(2):
        a.e(f"v_add_u32 v{vBS}, {144*KB + 2048*sub}, v{vL4}\ns_add_u32 s67, s98, {512*sub}")
        reduce_cs(a, vBS, BD, 67, lambda st: a.e(st + " sc1"))
    a.e(f"s_waitcnt vmcnt(0)\n{L}:")

def bg_signal(a):
    def bgsig():
        bg_reduce(a)
        a.e(f"""
        s_lshl_b32 s61, s2, 2
        s_add_u32 s61, s61, {BGF}
        v_mov_b32 v2, 1
        s_mov_b64 exec, 1
        buffer_store_dword v2, v{vZ}, s[8:11], s61 offen sc1
        s_mov_b64 exec, -1
        """)
    arrive(a, 4, bgsig, second=True)

def qkv_sig(a):
    a.e(f"""
    s_lshl_b32 s61, s{sL}, 11
    s_lshr_b32 s62, s{sJ}, 1
    s_lshl_b32 s62, s62, 7
    s_add_u32 s61, s61, s62
    s_lshl_b32 s62, s{sG}, 1
    s_and_b32 s63, s{sJ}, 1
    s_add_u32 s62, s62, s63
    s_lshl_b32 s62, s62, 2
    s_add_u32 s61, s61, s62
    s_add_u32 s61, s61, {QFL}
    v_mov_b32 v2, 1
    s_mov_b64 exec, 1
    buffer_store_dword v2, v{vZ}, s[8:11], s61 offen sc1
    s_mov_b64 exec, -1
    """)

def stage_qkv0(a, L_roles, warm, ticket, roles):
    NS, SB = 5, 28 * KB
    ST_L, CS_L = XCH + 1024, XCH + 2048
    vXA = 8
    vTN = 20
    def common_addr(natural):
        a.e(f"""
        v_and_b32 v24, 31, v{vL}
        v_lshrrev_b32 v25, 5, v{vL}
        v_bfe_u32 v26, v{vL}, 1, 3
        v_xor_b32 v25, v25, v26
        v_lshlrev_b32 v25, 4, v25
        v_lshl_add_u32 v25, v24, 7, v25
        s_lshl_b32 s60, s{sLW}, 2
        s_add_u32 s60, s60, {12*KB}
        v_add_u32 v25, s60, v25
        """)
        for kk in range(4):
            a.e(f"v_xor_b32 v{vXA+3*kk}, {32*kk}, v25\nv_add_u32 v{vXA+3*kk+1}, 0x10000, v{vXA+3*kk}\nv_add_u32 v{vXA+3*kk+2}, 0x20000, v{vXA+3*kk}")
        tr_addr(a, vTN, vL, 2)
        if natural:
            a.e(f"v_and_b32 v2, 32, v{vL}\nv_lshl_add_u32 v{vTN}, v2, 3, v{vTN}")
        else:
            a.e(f"s_mul_i32 s60, s{sLW}, 3\nv_add_u32 v{vTN}, s60, v{vTN}")
        a.e(f"v_add_u32 v{vTN+1}, 0x10000, v{vTN}\nv_add_u32 v{vTN+2}, 0x20000, v{vTN}")
    def xrd(dst, c, kk):
        va, off = lds_win((c % NS) * SB, (vXA + 3 * kk, vXA + 3 * kk + 1, vXA + 3 * kk + 2))
        return f"ds_read_b128 {R(dst)}, v{va} offset:{off}"
    def wrd(dst, off, second):
        va, o = lds_win(off, (vTN, vTN + 1, vTN + 2))
        return f"ds_read_b64_tr_b16 v[{dst}:{dst+1}], v{va} offset:{o}\nds_read_b64_tr_b16 v[{dst+2}:{dst+3}], v{va} offset:{o+second}"
    def verdict_read():
        a.e(f"v_mov_b32 v2, {XCH}\nds_read_b64 v[30:31], v2")
    def verdict_branch():
        Lr = a.label("valid")
        a.e(f"""
        v_readfirstlane_b32 s60, v30
        s_andn2_b32 s60, s60, s{sREDO}
        s_mov_b32 s{sREDO}, 3
        s_cmp_eq_u32 s60, 0
        s_cbranch_scc1 {Lr}
        v_readfirstlane_b32 s61, v31
        s_waitcnt vmcnt(0) lgkmcnt(0)
        s_nop 15
        s_barrier
        s_mov_b32 s{sJ}, s61
        s_cmp_eq_u32 s60, 1
        s_cbranch_scc1 {L_roles}
        s_and_b32 s{sG}, s2, 7
        s_lshr_b32 s{sJ}, s2, 3
        s_mov_b32 s{sMODE}, 1
        s_branch {L_roles}
{Lr}:
        """)
    def comp():
        ACC, FR, TK, CSO, TMP, TKO, RO, ON, RB = 32, 80, 104, 116, 128, 140, 144, 148, 152
        DW, DT = 6, 3
        roles()
        a.e(f"""
        v_lshrrev_b32 v2, 3, v{vL}
        v_and_b32 v8, 7, v{vL}
        v_lshlrev_b32 v8, 4, v8
        v_lshl_add_u32 v8, v2, 10, v8
        s_lshl_b32 s62, s{sG}, 18
        s_lshl_b32 s63, s{sJ}, 13
        s_add_u32 s62, s62, s63
        s_lshl_b32 s63, s{sW}, 8
        s_add_u32 s62, s62, s63
        buffer_load_dwordx4 v[32:35], v8, s[56:59], s62 offen
        buffer_load_dwordx4 v[36:39], v8, s[56:59], s62 offen offset:128
        """)
        warm()
        Lx = a.label("xw")
        a.e(f"""
        s_lshl_b32 s60, s{sG}, 3
        s_lshr_b32 s61, s{sJ}, 2
        s_add_u32 s60, s60, s61
        s_lshl_b32 s60, s60, 12
        s_add_u32 s60, s60, s{sW10}
        s_and_b32 s61, s{sJ}, 3
        s_lshl_b32 s61, s61, 7
        s_add_u32 s60, s60, s61
        s_add_u32 s67, s60, {STA}
        v_lshrrev_b32 v9, 3, v{vL}
        v_lshlrev_b32 v9, 4, v9
        v_bfe_u32 v10, v{vL}, 2, 1
        v_lshl_add_u32 v9, v10, 2, v9
        v_bfe_u32 v10, v{vL}, 1, 1
        v_lshl_add_u32 v9, v10, 3, v9
        v_cmp_eq_u32 s[64:65], 1, v10
        v_and_b32 v10, 1, v{vL}
        v_lshl_add_u32 v9, v10, 9, v9
        v_cmp_eq_u32 s[68:69], 1, v10
        s_waitcnt vmcnt(1)
        s_or_b32 s60, s{sW}, s{sREDO}
        s_cmp_eq_u32 s60, 0
        s_cbranch_scc1 {Lx}
        s_waitcnt vmcnt(0)
{Lx}:
        """)
        for h in range(2):
            S_, Q_ = 40 + 2 * h, 41 + 2 * h
            a.e(f"v_mov_b32 v{S_}, 0\nv_mov_b32 v{Q_}, 0")
            for r in range(4):
                x = 32 + 4 * h + r
                a.e(f"""
                v_lshlrev_b32 v44, 16, v{x}
                v_and_b32 v45, 0xffff0000, v{x}
                v_add_f32 v{S_}, v{S_}, v44
                v_fmac_f32 v{Q_}, v44, v44
                v_add_f32 v{S_}, v{S_}, v45
                v_fmac_f32 v{Q_}, v45, v45
                """)
        a.e("s_nop 1")
        for perm in ("[1,0,3,2]", "[2,3,0,1]"):
            for r in range(40, 44):
                a.e(f"v_add_f32_dpp v{r}, v{r}, v{r} quad_perm:{perm} row_mask:0xf bank_mask:0xf")
            a.e("s_nop 0")
        a.e(f"""
        v_cndmask_b32 v40, v40, v41, s[68:69]
        v_cndmask_b32 v42, v42, v43, s[68:69]
        v_cndmask_b32 v40, v40, v42, s[64:65]
        buffer_store_dword v40, v9, s[8:11], s67 offen sc1
        """)
        if OPT["coop"] != 'x':
            c0 = int(OPT["coop"])
            n = (8 - c0) * 6
            a.e(f"s_mul_i32 s62, s{sJ}, 6144")
            for i in range((n + 3) // 4):
                a.e(f"""
                s_add_u32 s60, s{sW}, {4*i}
                s_min_u32 s60, s60, {n-1}
                s_mul_i32 s61, s60, 43
                s_lshr_b32 s61, s61, 8
                s_mul_i32 s63, s61, 6
                s_sub_u32 s60, s60, s63
                s_add_u32 s61, s61, s{sG}
                s_add_u32 s61, s61, {c0}
                s_and_b32 s61, s61, 7
                s_mul_i32 s61, s61, {64*3072}
                s_lshl_b32 s60, s60, 10
                s_add_u32 s60, s60, s61
                s_add_u32 s60, s60, s62
                buffer_load_dwordx4 v[204:207], v{vL16}, s[80:83], s60 offen
                """)
        if OPT["tlb"]:
            Lt = a.label("tlb")
            a.e(f"""
            s_xor_b32 s60, s{sW}, 1
            s_or_b32 s60, s60, s{sREDO}
            s_cmp_lg_u32 s60, 0
            s_cbranch_scc1 {Lt}
            v_lshlrev_b32 v9, 21, v{vL}
            buffer_load_dword v250, v9, s[8:11], 0 offen
            s_mov_b64 exec, 1
            global_load_dword v250, v{vZ}, s[40:41]
            global_load_dword v250, v{vZ}, s[44:45]
            global_load_dword v250, v{vZ}, s[46:47]
            global_load_dword v250, v{vZ}, s[48:49]
            global_load_dword v250, v{vZ}, s[50:51]
            s_mov_b64 exec, -1
{Lt}:
            """)
        common_addr(True)
        a.e(f"""
        s_lshl_b32 s4, s{sG}, 3
        s_and_b32 s5, s{sJ}, 1
        s_lshl_b32 s5, s5, 2
        s_add_u32 s4, s4, s5
        s_add_u32 s4, s4, s{sW}          ; tb
        s_lshr_b32 s5, s{sJ}, 1          ; ct
        s_lshl_b32 s68, s5, 9
        s_mul_i32 s69, s{sG}, {CSPQ_G}
        s_add_u32 s68, s68, s69
        s_add_u32 s68, s68, {CSPQ - CS_L}
        s_lshl_b32 s32, s5, 11
        s_mul_i32 s33, s4, {86*KB}
        s_add_u32 s32, s32, s33
        s_add_u32 s32, s32, s{sQB}
        s_lshl_b32 s34, s5, 18
        s_lshl_b32 s35, s4, 11
        s_add_u32 s34, s34, s35
        s_add_u32 s34, s34, {KV}
        s_add_u32 s35, s34, 0x20000
        v_bfe_u32 v{TMP+8}, v{vL}, 4, 1
        v_lshlrev_b32 v{TMP+8}, 17, v{TMP+8}
        v_lshrrev_b32 v{TMP+6}, 5, v{vL}
        v_lshl_add_u32 v{TMP+8}, v{TMP+6}, 8, v{TMP+8}
        v_and_b32 v{TMP+6}, 15, v{vL}
        v_lshl_add_u32 v{TMP+8}, v{TMP+6}, 4, v{TMP+8}
        v_and_b32 v{TMP+9}, 31, v{vL}
        v_lshlrev_b32 v{TMP+9}, 4, v{TMP+9}
        v_lshrrev_b32 v{TMP+6}, 5, v{vL}
        v_lshl_add_u32 v{TMP+9}, v{TMP+6}, 3, v{TMP+9}
        v_add_u32 v{TMP+9}, {CS_L}, v{TMP+9}
        s_lshl_b32 s7, s4, 12
        s_add_u32 s7, s7, {STA}
        s_mov_b32 s6, 0x05040100
        """)
        for sub in range(3):
            a.e(f"v_mov_b32 v{CSO+4*sub+3}, 0")
        for i in range(4):
            a.e(f"v_mov_b32 v{ON+i}, 0x3f803f80")
        QD = int(OPT['q0d'])
        items = []
        for ks in range(32):
            items += [("t", ks, 0), ("w", ks, 1), ("w", ks, 2)] + ([("w", ks, 0)] if ks < QD else [])
        NM = len(items)
        for ks in range(QD, 32):
            items += [("t", ks, 0), ("w", ks, 0)]
        tok_of, lastuse = {}, {}
        for i, it in enumerate(items):
            if it[0] == "t": cur = i
            tok_of[i] = cur; lastuse[cur] = i; lastuse[i] = max(lastuse.get(i, i), i)
        first = {min(i for i, it in enumerate(items) if it[1] // 4 == c): c for c in range(8)}
        cum = []
        st = dict(i=0, ops=0, nw=0, nt=0, done=-1)
        slot, holder = {}, {}
        def issue():
            i = st["i"]
            if i >= len(items):
                return False
            k, ks, f = items[i]
            sl = TK + 4 * (st["nt"] % DT) if k == "t" else FR + 4 * (st["nw"] % DW)
            if sl in holder and lastuse[holder[sl]] > st["done"]:
                return False
            if i in first:
                c = first[i]
                if c == 3:
                    a.e("s_waitcnt vmcnt(0)")
                    ticket()
                a.bar()
                if c == 0:
                    a.stamp(1)
                elif OPT["qstamp"]:
                    a.stamp(17 + c)
                if c == 4:
                    verdict_read()
                if c == 5:
                    verdict_branch()
                if c == 6:
                    for q in range(4):
                        a.e(f"buffer_load_dwordx4 {R(RB+4*q)}, v{vL16}, s[8:11], s7 offen offset:{1024*q} sc1")
            slot[i] = sl; holder[sl] = i
            if k == "t":
                st["nt"] += 1
                a.e(xrd(sl, ks // 4, ks % 4)); st["ops"] += 1
            else:
                st["nw"] += 1
                a.e(wrd(sl, ((ks // 4) % NS) * SB + ((ks % 4) * 3 + f) * KB, 256)); st["ops"] += 2
            cum.append(st["ops"]); st["i"] += 1
            return True
        LA = int(OPT['q0la'])
        for _ in range(LA):
            issue()
        vMean, vRstd = TMP, TMP + 2
        def fill_fn():
            a.e("s_waitcnt vmcnt(0)")
            stats_finish(a, RB, vMean, vRstd, TMP + 1)
            split_hilo(a, vMean, TKO, TMP + 1, "tok")
            a.e(f"v_cmp_gt_u32 vcc, 32, v{vL}\nv_mov_b32 v{vRstd+1}, v{vRstd}\nv_mul_f32 v{TMP+4}, {f32(0.25*1.4426950408889634)}, v{vRstd}\nv_cndmask_b32 v{TMP+6}, 0, v{vRstd}, vcc")
            split_hilo(a, TMP + 6, RO, TMP + 1, "hl")
            a.e(f"v_mov_b32 v{TMP+5}, v{TMP+4}\ns_nop 0")
            a.e(mfma(RB, RO, ON, "0"))
        def cst():
            for sub in range(3):
                a.e(f"buffer_store_dwordx2 v[{CSO+4*sub}:{CSO+4*sub+1}], v{TMP+9}, s[8:11], s68 offen sc1\ns_add_u32 s68, s68, 8192")
        def corr():
            a.bar()
            for sub in range(3):
                a.e(f"ds_read_b64 v[{CSO+4*sub}:{CSO+4*sub+1}], v{TMP+9} offset:{512*sub}")
            a.e("s_waitcnt lgkmcnt(0)")
            for sub in range(3):
                a.e(f"v_perm_b32 v{CSO+4*sub+2}, v{CSO+4*sub+1}, v{CSO+4*sub}, s6")
            a.e("s_nop 1")
            a.e(mfma(ACC + 16, CSO + 4, TKO))
            a.e(mfma(ACC + 32, TKO, CSO + 8))
            a.e(mfma(ACC, CSO, TKO))
            only_wave0(a, cst, 3)
        def kv_fn():
            for sub in (1, 2):
                p = ACC + 16 * sub
                for r in range(16):
                    a.e(f"v_mul_f32 v{p+r}, v{p+r}, v{vRstd if sub == 1 else RB + r}")
                for r in range(8):
                    a.e(f"v_cvt_pk_bf16_f32 v{p+r}, v{p+2*r}, v{p+2*r+1}")
                if sub == 1:
                    a.e(f"buffer_store_dwordx4 {R(p)}, v{vL16}, s[8:11], s34 offen sc1\nbuffer_store_dwordx4 {R(p+4)}, v{vL16}, s[8:11], s35 offen sc1")
                else:
                    a.e(f"buffer_store_dwordx4 {R(p)}, v{TMP+8}, s[8:11], s34 offen offset:1024 sc1\nbuffer_store_dwordx4 {R(p+4)}, v{TMP+8}, s[8:11], s34 offen offset:1536 sc1")
        fq = a.capture(fill_fn)
        kq = a.capture(kv_fn)
        f0 = min(i for i, it in enumerate(items) if it[1] == 26)
        for i, (k, ks, f) in enumerate(items):
            if i == NM:
                assert not fq
                a.stamp(2)
                corr()
            if k == "t":
                continue
            a.e(f"s_waitcnt lgkmcnt({min(15, st['ops'] - cum[i])})")
            C = "0" if ks == 0 else None
            w, t = slot[i], slot[tok_of[i]]
            a.e(mfma(ACC + 16 * f, w, t, C) if f < 2 else mfma(ACC + 16 * f, t, w, C))
            st["done"] = i
            while st["i"] <= i + LA and issue():
                pass
            if f0 <= i < NM:
                for _ in range(5):
                    if fq: a.e(fq.pop(0))
            if i >= NM + 5:
                for _ in range(int(OPT['q0g'])):
                    if kq: a.e(kq.pop(0))
        while kq:
            a.e(kq.pop(0))
        a.e("s_nop 11")
        p = ACC
        for r in range(8):
            a.e(f"v_pk_mul_f32 v[{p+2*r}:{p+2*r+1}], v[{p+2*r}:{p+2*r+1}], v[{TMP+4}:{TMP+5}]")
        for r in range(8):
            a.e(f"v_cvt_pk_bf16_f32 v{p+r}, v{p+2*r}, v{p+2*r+1}")
        a.e(f"buffer_store_dwordx4 {R(p)}, v{vL16}, s[8:11], s32 offen sc1\nbuffer_store_dwordx4 {R(p+4)}, v{vL16}, s[8:11], s32 offen offset:1024 sc1")
        signal_wave(a, 1, 3)
    def load():
        vWQ, vX0, vX1, WF, XF_, CSA, ON, vS, vQ, T = 24, 25, 26, 32, 44, 64, 60, 112, 113, 114
        a.e(f"""
        v_lshrrev_b32 v2, 2, v{vL}
        v_mul_u32_u24 v{vWQ}, 3072, v2
        v_and_b32 v2, 3, v{vL}
        v_lshl_add_u32 v{vWQ}, v2, 4, v{vWQ}
        v_and_b32 v2, 7, v{vL}
        v_lshrrev_b32 v27, 4, v{vL}
        v_xor_b32 v2, v2, v27
        v_lshlrev_b32 v2, 4, v2
        v_lshrrev_b32 v27, 3, v{vL}
        v_lshl_add_u32 v{vX0}, v27, 10, v2
        v_xor_b32 v{vX1}, 64, v{vX0}
        s_lshl_b32 s4, s{sG}, 3
        s_and_b32 s7, s{sJ}, 1
        s_lshl_b32 s5, s7, 2
        s_add_u32 s4, s4, s5
        s_lshl_b32 s4, s4, 15
        s_lshl_b32 s5, s{sLW}, 5
        s_add_u32 s4, s4, s5             ; x byte offset of token block
        s_lshr_b32 s5, s{sJ}, 1
        s_lshl_b32 s5, s5, 6
        s_mul_i32 s6, s{sLW}, 48
        s_add_u32 s5, s5, s6
        s_mul_i32 s32, s{sLW}, 3         ; lw*3K
        s_lshl_b32 s33, s{sLW}, 2        ; lw*4K
        """)
        last = {}
        def issue(c):
            B = (c % NS) * SB
            a.e(f"""
            s_add_u32 s61, s{sG}, {c}
            s_and_b32 s61, s61, 7
            s_mul_i32 s60, s61, {64*3072}
            s_add_u32 s60, s60, s5
            s_add_u32 m0, s32, {B}
            s_lshl_b32 s61, s61, 7
            s_add_u32 s61, s61, s4
            """)
            for f in (1, 2, 0):
                a.vmem(f"buffer_load_dwordx4 v{vWQ}, s[80:83], s60 offen offset:{f*KB} lds")
            a.e(f"s_add_u32 m0, s33, {B + 12*KB}")
            for i in range(4):
                a.e(f"s_add_u32 s60, s61, {i*7*KB}")
                last[c] = a.vmem(f"buffer_load_dwordx4 v{vX1 if i & 1 else vX0}, s[56:59], s60 offen offset:{i*KB} lds")
        a.vm = 0
        UP = int(OPT['q0up'])
        for c in range(UP):
            issue(c)
        roles()
        a.e(f"v_mov_b32 v28, v24\nv_mov_b32 v29, v25\nv_mov_b32 v30, v26")
        common_addr(False)
        a.e(f"v_mov_b32 v24, v28\nv_mov_b32 v25, v29\nv_mov_b32 v26, v30")
        for i in range(4):
            a.e(f"v_mov_b32 v{ON+i}, 0x3f803f80")
        EARLY = OPT['q0e'] != 'x'
        if EARLY:
            a.e(f"s_waitcnt vmcnt({OPT['q0e']})")
            for c in range(UP, 5):
                issue(c)
        def sig0():
            Ls = a.label("tk"); Lp = a.label("tkp"); Ld = a.label("tkd"); Ln = a.label("tkn")
            a.e(f"""
            s_cmp_lg_u32 s{sREDO}, 0
            s_cbranch_scc1 {Ls}
            s_mov_b32 s60, 0
            s_mov_b64 exec, 0xff
            v_cmp_ne_u32 vcc, 0x2000, v123
            v_cmp_ne_u32 s[62:63], -1, v122
            s_nop 1
            s_or_b64 s[62:63], s[62:63], vcc
            s_cmp_eq_u64 s[62:63], 0
            s_cbranch_scc1 {Ld if str(OPT['force_mode']) != '0' else Ld + 'f'}
{Lp}:
            s_add_u32 s60, s60, 1
            v_bfe_u32 v121, v123, 8, 16
            s_nop 0
            v_readlane_b32 s62, v121, 0
            """)
            for i in range(1, 8):
                a.e(f"v_readlane_b32 s63, v121, {i}\ns_add_u32 s62, s62, s63")
            a.e(f"""
            s_cmp_gt_u32 s60, 0x4000
            s_cbranch_scc1 {Ld}
            s_cmp_ge_u32 s62, 256
            s_cbranch_scc1 {Ld}
            buffer_load_dwordx2 v[122:123], v120, s[84:87], 0 offen sc1
            s_waitcnt vmcnt(0)
            s_branch {Lp}
{Ld}:
            v_and_b32 v2, 0xffffff00, v123
            v_cmp_ne_u32 vcc, 0x2000, v2
            v_cmp_ne_u32 s[62:63], -1, v122
            v_cmp_ne_u32 s[64:65], v2, v123
            s_nop 2
            s_or_b64 s[62:63], s[62:63], s[64:65]
            s_cmp_lg_u64 s[62:63], 0
            s_cselect_b32 s60, 1, {OPT['force_mode']}
            s_cmp_lg_u64 vcc, 0
            s_cselect_b32 s60, 2, s60
{Ld}f:
            s_mov_b64 exec, -1
            v_mov_b32 v2, s60
            v_mov_b32 v120, {XCH}
            ds_write_b32 v120, v2
            s_waitcnt lgkmcnt(0)
            s_cmp_lg_u32 s60, 0
            s_cbranch_scc1 {Ln}
{Ls}:
            """)
            signal_group(a, 0)
            a.e(f"{Ln}:")
        for k in range(8):
            a.wait_vm(last[k])
            if k == 6:
                L = a.label("w4")
                a.e(f"s_cmp_lg_u32 s{sW}, 4\ns_cbranch_scc1 {L}\ns_mov_b32 s62, 1")
                a.wait_vm(pre2)
                a.e(f"s_mov_b32 exec_lo, s63\ns_mov_b32 exec_hi, 0\nv_min3_u32 v124, v124, v125, v126\nv_min_u32 v124, v124, v127\nv_cmp_gt_u32 vcc, 1, v124\ns_mov_b64 exec, -1\ns_nop 0\ns_cbranch_vccz {L}")
                poll(a, sGFL, "s63", 62)
                a.e(f"{L}:")
            a.bar()
            if k == 4:
                verdict_read()
            if k == 5:
                verdict_branch()
                a.e(f"s_lshl_b32 s63, s7, 4\ns_lshl_b32 s63, 0xffff, s63\ns_mov_b32 exec_lo, s63\ns_mov_b32 exec_hi, 0")
                pre2 = a.vmem(f"buffer_load_dwordx4 {R(124)}, v{vL32}, s[8:11], s{sGFL} offen sc1")
                a.e("s_mov_b64 exec, -1")
            if k == 2:
                a.e(f"v_lshlrev_b32 v120, 5, v{vL}\ns_mov_b64 exec, 0xff")
                pre = a.vmem("buffer_load_dwordx2 v[122:123], v120, s[84:87], 0 offen sc1")
                a.e("s_mov_b64 exec, -1")
            for c in ({2: [5], 3: [6], 4: [7]} if EARLY else {0: [c_ for c_ in (1, 2, 3) if c_ >= UP], 1: [4], 2: [5], 3: [6], 4: [7]}).get(k, []):
                issue(c)
            if k == 5 and OPT["pwkv0"]:
                prewrite_kv(a, 0, 64, q=True)
            if k == 3:
                L = a.label("w4s")
                a.e(f"s_cmp_lg_u32 s{sW}, 4\ns_cbranch_scc1 {L}")
                vm = a.vm
                a.wait_vm(pre)
                sig0()
                a.vm = vm
                a.e(f"{L}:")
            B = (k % NS) * SB
            for f in range(3):
                a.e(wrd(WF + 4 * f, B + f * KB, 512))
            a.e("s_waitcnt lgkmcnt(0)")
            for f in range(3):
                a.e(mfma(CSA + 16 * f, ON, WF + 4 * f, "0" if k == 0 else None))
        a.e(f"""
        s_lshr_b32 s60, s{sLW}, 8
        v_and_b32 v{T+3}, 31, v{vL}
        v_lshl_add_u32 v{T+3}, v{T+3}, 4, s60
        v_add_u32 v{T+4}, {CS_L}, v{T+3}
        s_nop 7
        s_nop 7
        """)
        for f in range(3):
            split_hilo(a, CSA + 16 * f, T + 5 + f, T, "one")
        a.e("s_mov_b32 exec_lo, -1\ns_mov_b32 exec_hi, 0")
        for f in range(3):
            a.e(f"ds_write_b32 v{T+4}, v{T+5+f} offset:{512*f}")
        a.e("s_mov_b64 exec, -1\ns_waitcnt lgkmcnt(0)")
        a.bar()
        a.e(f"s_add_u32 s{sCNT}, s{sCNT}, 4")
    (by_role_lf if OPT['lf'] else by_role)(a, comp, load)

def stage_qkv(a, Q):
    ACC, FR, ST, CSO, TMP, TKO, RO, ON, TOK, NT, D = 8, 56, 72, 88, 100, 110, 114, 118, 122, 32, 4
    RB = ST
    def comp():
        a.e(f"""
        s_lshl_b32 s32, s{sG}, 3
        s_and_b32 s33, s{sJ}, 1
        s_lshl_b32 s33, s33, 2
        s_add_u32 s32, s32, s33
        s_add_u32 s32, s32, s{sW}
        s_lshr_b32 s33, s{sJ}, 1
        s_lshl_b32 s34, s32, 15
        s_add_u32 s34, s34, s{sXN}
        s_lshl_b32 s35, s32, 12
        s_add_u32 s35, s35, s{sSN}
        s_lshl_b32 s36, s33, 9
        s_mul_i32 s37, s{sG}, {CSPQ_G}
        s_add_u32 s36, s36, s37
        s_add_u32 s36, s36, {CSPQ}
        s_add_u32 s37, s36, 8192
        s_add_u32 s42, s36, 16384
        s_lshl_b32 s38, s33, 11
        s_mul_i32 s39, s32, {86*KB}
        s_add_u32 s38, s38, s39
        s_add_u32 s38, s38, s{sQB}
        s_lshl_b32 s40, s33, 18
        s_lshl_b32 s41, s32, 11
        s_add_u32 s40, s40, s41
        s_add_u32 s40, s40, s{sLAY}
        s_add_u32 s40, s40, {KV}
        s_add_u32 s41, s40, 0x20000
        v_bfe_u32 v{TMP+8}, v{vL}, 4, 1
        v_lshlrev_b32 v{TMP+8}, 17, v{TMP+8}
        v_lshrrev_b32 v{TMP+6}, 5, v{vL}
        v_lshl_add_u32 v{TMP+8}, v{TMP+6}, 8, v{TMP+8}
        v_and_b32 v{TMP+6}, 15, v{vL}
        v_lshl_add_u32 v{TMP+8}, v{TMP+6}, 4, v{TMP+8}
        """)
        csp_addr(a, TMP + 9, TMP + 1)
        for sub in range(3):
            a.e(f"v_mov_b32 v{CSO+4*sub+3}, 0")
        for i in range(4):
            a.e(f"v_mov_b32 v{ON+i}, 0x3f803f80")
        a.bar()
        a.stamp(1)
        tp = TokPipe(a, TOK, NT, 32, 34)
        last = [None]
        def ld(s_):
            return lambda: last.__setitem__(0, a.vmem(s_))
        aux = [ld(f"buffer_load_dwordx4 {R(ST+4*q)}, v{vL16}, s[8:11], s35 offen offset:{1024*q} sc1") for q in range(4)]
        aux += [ld(f"buffer_load_dwordx2 v[{CSO+4*i}:{CSO+4*i+1}], v{TMP+9}, s[8:11], s{sr} offen sc1") for i, sr in enumerate((36, 37, 42))]
        vMean, vRstd = TMP, TMP + 2
        def fill_fn():
            a.wait_vm(last[0])
            stats_finish(a, ST, vMean, vRstd, TMP + 1)
            split_hilo(a, vMean, TKO, TMP + 1, "tok")
            for sub in range(3):
                a.e(f"v_perm_b32 v{CSO+4*sub+2}, v{CSO+4*sub+1}, v{CSO+4*sub}, s59")
            a.e(f"v_cmp_gt_u32 vcc, 32, v{vL}\nv_mov_b32 v{vRstd+1}, v{vRstd}\nv_mul_f32 v{TMP+4}, {f32(0.25*1.4426950408889634)}, v{vRstd}\nv_cndmask_b32 v{TMP+6}, 0, v{vRstd}, vcc")
            split_hilo(a, TMP + 6, RO, TMP + 1, "hl")
            a.e(f"v_mov_b32 v{TMP+5}, v{TMP+4}\ns_nop 0")
            a.e(mfma(ACC, CSO, TKO, "0"))
            a.e(mfma(ACC + 16, CSO + 4, TKO))
            a.e(mfma(ACC + 32, TKO, CSO + 8))
            a.e(mfma(RB, RO, ON, "0"))
        def kv_fn():
            for sub in (1, 2):
                for r in range(16):
                    x = ACC + 16 * sub + r
                    a.e(f"v_mul_f32 v{x}, v{x}, v{vRstd if sub == 1 else RB + r}")
                p = ACC + 16 * sub
                for r in range(8):
                    a.e(f"v_cvt_pk_bf16_f32 v{p+r}, v{p+2*r}, v{p+2*r+1}")
                if sub == 1:
                    a.e(f"buffer_store_dwordx4 {R(p)}, v{vL16}, s[8:11], s40 offen sc1")
                    a.e(f"buffer_store_dwordx4 {R(p+4)}, v{vL16}, s[8:11], s41 offen sc1")
                else:
                    a.e(f"buffer_store_dwordx4 {R(p)}, v{TMP+8}, s[8:11], s40 offen offset:1024 sc1")
                    a.e(f"buffer_store_dwordx4 {R(p+4)}, v{TMP+8}, s[8:11], s40 offen offset:1536 sc1")
        sched = [(ks, f) for ks in range(32) for f in (1, 2)] + [(ks, 0) for ks in range(32)]
        frags = [lds_win(Q[ks // 4].lds * KB + ((ks % 4) * 3 + f) * KB) for ks, f in sched]
        fp = FragPipe(a, FR, D, frags)
        def em(ks, f, w, t):
            C = "0" if ks == 0 and f != 0 else None
            a.e(mfma(ACC + 16 * f, w, t, C) if f < 2 else mfma(ACC + 16 * f, t, w, C))
        gemm_loop(a, fp, tp, sched, {32}, em, tok0=int(OPT['qtok0']), aux=aux, **{'A': {}, 'B': dict(aux_late=True, aux_at=set(range(1, 15, 2)))}[OPT['qv']], tok_at=set(range(0, 64, 2)),
                  fills={25: lambda: a.capture(fill_fn), 67: lambda: a.capture(kv_fn)}, per_gap=int(OPT['qpg']))
        a.stamp(2)
        a.e("s_nop 11")
        p = ACC
        for r in range(8):
            a.e(f"v_pk_mul_f32 v[{p+2*r}:{p+2*r+1}], v[{p+2*r}:{p+2*r+1}], v[{TMP+4}:{TMP+5}]")
        for r in range(8):
            a.e(f"v_cvt_pk_bf16_f32 v{p+r}, v{p+2*r}, v{p+2*r+1}")
        stores(a, [f"buffer_store_dwordx4 {R(p)}, v{vL16}, s[8:11], s38 offen",
                   f"buffer_store_dwordx4 {R(p+4)}, v{vL16}, s[8:11], s38 offen offset:1024"])
        signal_wave(a, 1, 3)
    def load():
        a.vm = 0
        for ch in Q:
            a.vm += ch.nblk // 4
            ch.last = a.vm - 1
        only_wave0(a, lambda: dep_half_poll(a, sJ, 0), int(OPT['pw']))
        loader_stage(a, [Q[0:4], Q[4:8]], {})
        a.e(f"s_add_u32 s{sCNT}, s{sCNT}, 4")
    by_role(a, comp, load)

def fast_only(a, fn):
    L = a.label("fo")
    a.e(f"s_cmp_lg_u32 s{sMODE}, 0\ns_cbranch_scc1 {L}")
    vm = a.vm
    fn()
    a.vm = vm
    a.e(f"{L}:")

def warm_attn(a):
    a.e(f"""
    v_lshrrev_b32 v167, 3, v{vL}
    v_lshlrev_b32 v167, 15, v167
    v_and_b32 v166, 7, v{vL}
    v_lshl_add_u32 v167, v166, 7, v167
    s_lshl_b32 s60, s{sG}, 18
    s_lshl_b32 s61, s{sJ}, 10
    s_add_u32 s61, s61, s60
    s_add_u32 s61, s61, {OF}
    v_lshrrev_b32 v166, 5, v{vL}
    v_and_b32 v165, 31, v{vL}
    v_lshlrev_b32 v165, 7, v165
    v_lshl_add_u32 v165, v166, 15, v165
    s_and_b32 s62, s{sJ}, 3
    s_lshl_b32 s63, s62, 16
    s_add_u32 s63, s63, s60
    s_lshr_b32 s64, s{sJ}, 2
    s_lshl_b32 s65, s64, 12
    s_add_u32 s63, s63, s65
    s_add_u32 s63, s63, {XB}
    v_and_b32 v166, 7, v{vL}
    v_lshlrev_b32 v166, 7, v166
    v_bfe_u32 v2, v{vL}, 3, 1
    v_lshl_add_u32 v166, v2, 12, v166
    s_lshl_b32 s60, s{sG}, 15
    s_lshl_b32 s62, s62, 13
    s_add_u32 s60, s60, s62
    s_lshr_b32 s64, s64, 1
    s_lshl_b32 s64, s64, 10
    s_add_u32 s60, s60, s64
    s_add_u32 s60, s60, {STB}
    s_cmp_eq_u32 s{sLW}, 1024
    s_cselect_b32 s61, s63, s61
    s_cselect_b64 vcc, -1, 0
    v_cndmask_b32 v167, v167, v165, vcc
    s_cmp_eq_u32 s{sLW}, 2048
    s_cselect_b32 s61, s60, s61
    s_cselect_b64 vcc, -1, 0
    v_cndmask_b32 v167, v167, v166, vcc
    s_lshr_b32 s62, s{sJ}, 1
    s_min_u32 s63, s62, 14
    s_mul_i32 s63, s63, 1536
    s_add_u32 s63, s63, {CSPG}
    s_lshl_b32 s62, s62, 9
    s_mul_i32 s64, s{sG}, {CSPQ_G}
    s_add_u32 s62, s62, s64
    s_add_u32 s62, s62, {CSPQ}
    v_and_b32 v165, 15, v{vL}
    v_min_u32 v165, 11, v165
    v_lshlrev_b32 v165, 7, v165
    v_bfe_u32 v166, v{vL}, 4, 1
    v_mul_u32_u24 v166, {CSPU - CSPG}, v166
    v_add3_u32 v165, v165, v166, s63
    v_and_b32 v166, 3, v{vL}
    v_lshlrev_b32 v166, 7, v166
    v_bfe_u32 v2, v{vL}, 2, 2
    v_min_u32 v2, 2, v2
    v_lshl_add_u32 v166, v2, 13, v166
    v_add_u32 v166, s62, v166
    v_cmp_gt_u32 vcc, 32, v{vL}
    s_nop 1
    v_cndmask_b32 v165, v166, v165, vcc
    s_cmp_eq_u32 s{sW}, {7 if OPT['cswarm'] else 9}
    s_cselect_b32 s61, 0, s61
    s_cselect_b64 vcc, -1, 0
    v_cndmask_b32 v167, v167, v165, vcc
    buffer_load_dword v165, v167, s[8:11], s61 offen
    """)

def warm_h(a, va=8):
    def fn():
        a.e(f"""
        v_min_u32 v{va}, 47, v{vL}
        v_lshlrev_b32 v{va}, 7, v{va}
        s_lshl_b32 s64, s{sG}, 3
        s_and_b32 s65, s{sJ}, 1
        s_lshl_b32 s65, s65, 2
        s_add_u32 s64, s64, s65
        s_lshr_b32 s65, s{sLW}, 10
        s_add_u32 s64, s64, s65
        s_mul_i32 s64, s64, {86*KB}
        s_lshr_b32 s65, s{sJ}, 1
        s_min_u32 s65, s65, 13
        s_mul_i32 s65, s65, 6144
        s_add_u32 s64, s64, s65
        s_add_u32 s64, s64, {HF}
        buffer_load_dword v{va+1}, v{va}, s[8:11], s64 offen
        s_add_u32 s64, s64, 6144
        s_cmp_lg_u32 s{sJ}, 28
        s_cbranch_scc0 .Lwh{a.uid}
        s_cmp_lg_u32 s{sJ}, 29
        s_cbranch_scc1 .Lwe{a.uid}
.Lwh{a.uid}:
        buffer_load_dword v{va+1}, v{va}, s[8:11], s64 offen
.Lwe{a.uid}:
        """)
        a.uid += 1
    fast_only(a, fn)

def prewrite_kv(a, off, D, q=False):
    a.e(f"""
    s_lshr_b32 s60, s{sLW}, 10
    s_lshl_b32 s61, s{sG}, 3
    s_and_b32 s62, s{sJ}, 1
    s_lshl_b32 s62, s62, 2
    s_add_u32 s61, s61, s62
    s_add_u32 s61, s61, s60
    s_lshr_b32 s62, s{sJ}, 1
    s_lshl_b32 s63, s62, 18
    s_lshl_b32 s64, s61, 11
    s_add_u32 s63, s63, s64
    s_add_u32 s63, s63, {KV + off}
    s_add_u32 s64, s63, 0x20000
    """)
    for sr in (63, 64):
        for o in (0, 1024):
            a.e(f"buffer_store_dwordx4 {R(D)}, v{vL16}, s[8:11], s{sr} offen offset:{o} sc1")
    if q:
        a.e(f"s_mul_i32 s61, s61, {86*KB}\ns_lshl_b32 s62, s62, 11\ns_add_u32 s61, s61, s62\ns_add_u32 s61, s61, {QF0}")
        for o in (0, 1024):
            a.e(f"buffer_store_dwordx4 {R(D)}, v{vL16}, s[8:11], s61 offen offset:{o} sc1")

def prewrite(a):
    D = 168
    a.e(f"""
    s_lshr_b32 s60, s{sLW}, 10
    s_lshl_b32 s61, s{sG}, 3
    s_lshl_b32 s62, s60, 1
    s_add_u32 s62, s62, s61
    s_lshl_b32 s62, s62, 15
    s_lshl_b32 s63, s{sJ}, 10
    s_add_u32 s62, s62, s63
    s_add_u32 s62, s62, {OF}
    buffer_store_dwordx4 {R(D)}, v{vL16}, s[8:11], s62 offen sc1
    s_add_u32 s62, s62, 32768
    buffer_store_dwordx4 {R(D)}, v{vL16}, s[8:11], s62 offen sc1
    s_and_b32 s62, s{sJ}, 3
    s_lshl_b32 s62, s62, 1
    s_add_u32 s62, s62, s61
    s_and_b32 s63, s60, 1
    s_add_u32 s62, s62, s63
    s_lshr_b32 s63, s{sJ}, 2
    s_lshl_b32 s63, s63, 1
    s_lshr_b32 s64, s60, 1
    s_add_u32 s63, s63, s64
    s_lshl_b32 s64, s62, 15
    s_lshl_b32 s65, s63, 11
    s_add_u32 s64, s64, s65
    s_add_u32 s64, s64, {XB}
    buffer_store_dwordx4 {R(D)}, v{vL16}, s[8:11], s64 offen sc1
    buffer_store_dwordx4 {R(D)}, v{vL16}, s[8:11], s64 offen offset:1024 sc1
    s_lshl_b32 s64, s62, 12
    s_lshr_b32 s65, s63, 2
    s_lshl_b32 s65, s65, 10
    s_add_u32 s64, s64, s65
    s_add_u32 s64, s64, {STB}
    buffer_store_dwordx4 {R(D)}, v{vL16}, s[8:11], s64 offen sc1
    s_and_b32 s62, s{sJ}, 1
    s_lshl_b32 s62, s62, 2
    s_add_u32 s62, s62, s61
    s_add_u32 s62, s62, s60
    s_mul_i32 s62, s62, {86*KB}
    s_lshr_b32 s63, s{sJ}, 1
    s_mul_i32 s63, s63, 6144
    s_min_u32 s63, s63, {80*KB}
    s_add_u32 s62, s62, s63
    s_add_u32 s62, s62, {HF}
    s_add_u32 s63, s62, 4096
    """)
    for i in range(6):
        a.e(f"buffer_store_dwordx4 {R(D)}, v{vL16}, s[8:11], s{62 + i // 4} offen offset:{(i % 4) * KB} sc1")
    if OPT["pwkv"]:
        prewrite_kv(a, LAY, D)

def res_load(a):
    L0 = a.label("rl0"); L1 = a.label("rl1")
    a.e(f"""
    s_cmp_ge_u32 s{sW}, 4
    s_cbranch_scc1 {L0}
    s_lshl_b32 s60, s{sG}, 3
    s_and_b32 s61, s{sJ}, 3
    s_lshl_b32 s61, s61, 1
    s_add_u32 s60, s60, s61
    s_and_b32 s61, s{sW}, 1
    s_add_u32 s60, s60, s61
    s_lshl_b32 s60, s60, 15          ; tb*32K
    s_lshr_b32 s61, s{sJ}, 2
    s_lshl_b32 s61, s61, 1
    s_lshr_b32 s62, s{sW}, 1
    s_add_u32 s61, s61, s62          ; fs
    s_cmp_eq_u32 s{sL}, 0
    s_cbranch_scc1 {L1}
    s_lshl_b32 s61, s61, 11
    s_add_u32 s60, s60, s61
    s_add_u32 s60, s60, s{sXN}
    buffer_load_dwordx4 {R(RS)}, v{vL16}, s[8:11], s60 offen sc1
    buffer_load_dwordx4 {R(RS+4)}, v{vL16}, s[8:11], s60 offen offset:1024 sc1
    s_branch {L0}
{L1}:
    s_load_dwordx2 s[64:65], s[0:1], {A_X}
    s_mov_b32 s66, {2*MB}
    s_mov_b32 s67, 0x00020000
    v_and_b32 v2, 31, v{vL}
    v_lshlrev_b32 v2, 10, v2
    v_lshrrev_b32 v167, 5, v{vL}
    v_lshl_add_u32 v2, v167, 3, v2
    s_lshl_b32 s61, s61, 6
    s_add_u32 s60, s60, s61
    s_waitcnt lgkmcnt(0)
    """)
    for i in range(4):
        a.e(f"buffer_load_dwordx2 v[{RS+2*i}:{RS+2*i+1}], v2, s[64:67], s60 offen offset:{16*i}")
    a.e(f"{L0}:")

def stage_attn(a, early, late, prefetch):
    QA, KF, VF, P, SA, SB, OA, TMP = 8, 24, 32, 48, 56, 72, 88, 152
    vK, vV = 160, 162
    C16 = 172
    def pl():
        a.e(f"""
        s_and_b32 s63, s{sJ}, 30
        s_lshl_b32 s63, 3, s63
        s_add_u32 s62, s{sFB}, 1
        """)
        poll(a, sGFL, "s63", 62)
    Lg = a.label("gsig")
    a.e(f"s_cmp_ge_u32 s{sW}, 4\ns_cbranch_scc1 {Lg}")
    arrive(a, 4, lambda: qkv_sig(a))
    a.e(f"{Lg}:")
    a.e("s_setprio 0")
    a.e(f"""
    s_and_b32 s32, s{sW}, 1
    s_lshr_b32 s33, s{sW}, 1
    s_lshl_b32 s36, s{sG}, 3
    s_lshl_b32 s37, s32, 2
    s_add_u32 s36, s36, s37
    s_add_u32 s34, s36, s33
    s_lshl_b32 s35, s{sJ}, 17
    s_add_u32 s35, s35, s{sLAY}
    s_add_u32 s35, s35, {KV}
    s_lshl_b32 s38, s33, 12
    s_lshl_b32 s46, s{sG}, 14
    s_add_u32 s46, s46, s38
    s_lshl_b32 s53, s{sL}, 11
    s_lshr_b32 s47, s{sJ}, 1
    s_lshl_b32 s47, s47, 7
    s_add_u32 s53, s53, s47
    s_add_u32 s53, s53, {QFL}        ; global flag line of this col tile
    s_lshl_b32 s39, s{sJ}, 10
    s_add_u32 s39, s39, s{sQB}
    s_mul_i32 s36, s36, {86*KB}
    s_add_u32 s39, s39, s36
    """)
    for i in range(4):
        a.e(f"s_add_u32 s37, s33, {i}\ns_and_b32 s37, s37, 3\ns_mul_i32 s37, s37, {86*KB}\ns_add_u32 s{40+i}, s39, s37")
    only_wave0(a, pl, int(OPT['pw']))
    a.bar()
    a.stamp(4)
    a.vm = 0
    def young(fn):
        L = a.label("yg")
        a.e(f"s_cmp_lt_u32 s{sW}, 4\ns_cbranch_scc1 {L}\ns_setprio 3")
        r = fn()
        a.e(f"s_setprio 0\n{L}:")
        return r
    def kv_issue(n=1):
        out = []
        for _ in range(n):
            a.e(f"s_mov_b32 m0, s54\ns_add_u32 s39, s55, s35\ns_add_u32 s54, s54, 16384\ns_add_u32 s55, s55, 16384")
            for b in range(4):
                i = a.vmem(f"buffer_load_dwordx4 v{vL16}, s[8:11], s39 offen offset:{b*KB} sc1 lds")
            a.e("s_and_b32 s55, s55, 0x1ffff")
            out.append(i)
        return out
    a.e(f"s_mov_b32 m0, s38\ns_add_u32 s39, s46, s35")
    a.vmem(f"buffer_load_dwordx4 v{vL16}, s[8:11], s39 offen sc1 lds")
    a.vmem(f"buffer_load_dwordx4 {R(QA)}, v{vL16}, s[8:11], s40 offen sc1")
    a.vmem(f"buffer_load_dwordx4 v{vL16}, s[8:11], s39 offen offset:1024 sc1 lds")
    for i in range(1, 4):
        a.vmem(f"buffer_load_dwordx4 {R(QA+4*i)}, v{vL16}, s[8:11], s{40+i} offen sc1")
    a.vmem(f"buffer_load_dwordx4 v{vL16}, s[8:11], s39 offen offset:2048 sc1 lds")
    kvc = [a.vmem(f"buffer_load_dwordx4 v{vL16}, s[8:11], s39 offen offset:3072 sc1 lds")]
    a.e(f"""
    s_lshl_b32 s37, s33, 12
    v_add_u32 v{vK}, s37, v{vL16}
    v_lshrrev_b32 v2, 5, v{vL}
    v_lshlrev_b32 v{vV}, 8, v2
    v_and_b32 v2, 15, v{vL}
    v_lshl_add_u32 v{vV}, v2, 4, v{vV}
    v_add_u32 v{TMP+7}, 1024, v{vV}
    v_add_u32 v{vV}, s37, v{TMP+7}
    s_mov_b32 s44, 0x0000ffff
    s_mov_b32 s45, 0x0000ffff
    v_and_b32 v2, 27, v{vL}
    v_cmp_eq_u32 vcc, 16, v2
    v_mov_b32 v{TMP}, 0x3f803f80
    s_nop 0
    v_cndmask_b32 v{TMP}, 0, v{TMP}, vcc
    """)
    for i in range(16):
        a.e(f"v_mov_b32 v{VF+i}, v{TMP}")
    XA_ = 228
    def xbase(w):
        return f"s_and_b32 s47, s{w}, 3\ns_mul_i32 s47, s47, 6912\ns_lshr_b32 s49, s{w}, 2\ns_lshl_b32 s49, s49, 16\ns_add_u32 s47, s47, s49\ns_add_u32 s47, s47, {64*KB}"
    def xsetup():
        a.e(xbase(sW))
        a.e(f"v_add_u32 v{XA_}, s47, v{vL16}\nv_add_u32 v{XA_+1}, s47, v{vL4}")
        for i in (1, 2, 3):
            a.e(f"s_sub_u32 s48, s33, {i}\ns_and_b32 s48, s48, 3\ns_lshl_b32 s48, s48, 1\ns_add_u32 s48, s48, s32")
            a.e(xbase(48))
            a.e(f"v_add_u32 v{XA_+2*i}, s47, v{vL16}\nv_add_u32 v{XA_+2*i+1}, s47, v{vL4}")
        a.e(f"""
        s_lshl_b32 s48, s34, 15
        s_lshl_b32 s49, s{sJ}, 10
        s_add_u32 s48, s48, s49
        s_add_u32 s48, s48, s{sLB}
        s_add_u32 s48, s48, {OF}
        """)
    def owrite(i):
        O_ = OA + 16 * i; o = (i - 1) * 2304
        a.e(f"ds_write_b128 v{XA_}, {R(O_)} offset:{o}\nds_write_b128 v{XA_}, {R(O_+4)} offset:{o+1024}\nds_write_b32 v{XA_+1}, v{O_+8} offset:{o+2048}")
    a.e(f"""
    s_lshl_b32 s54, s{sLW}, 2
    s_lshl_b32 s55, s{sG}, 14
    s_add_u32 s55, s55, s54
    s_add_u32 s54, s54, 16384
    s_add_u32 s55, s55, 16384
    s_and_b32 s55, s55, 0x1ffff
    s_waitcnt vmcnt(5)
    """)
    a.stamp(5)
    a.rstamp(26)
    def rdK(slot, o):
        a.e(f"ds_read_b128 {R(KF+4*slot)}, v{vK} offset:{o}")
    def rdV(slot, o):
        a.e(f"s_mov_b64 exec, s[44:45]\nds_read_b128 {R(VF+8*slot)}, v{vV} offset:{o}\nds_read_b128 {R(VF+8*slot+4)}, v{vV} offset:{o+512}\ns_mov_b64 exec, -1")
    rdK(0, 0); rdV(0, 0)
    a.e("s_waitcnt lgkmcnt(0)")
    a.e(mfma(SA, KF, QA, "0"))
    a.e("s_nop 7\ns_nop 3")
    base = "QK E0 E1 E2 E3 E4 E5 PV2p E6 E7 C0 C1 E8 C2 E9 C3 E10 E11 PV1 E12 E13 C4 E14 E15 C5 C6 C7"
    scheds = [base, base, base.replace("QK", "QK rK").replace("PV2p", "PV2p rV"), "W0 " + base]
    def bgpoll():
        Lp = a.label("bgp"); Ld = a.label("bgd")
        a.e(f"""
        s_mov_b32 s61, {BGF}
        s_mov_b32 s60, 0
{Lp}:
        buffer_load_dwordx4 v[168:171], v{vL16}, s[8:11], s61 offen sc1
        s_add_u32 s60, s60, 1
        s_waitcnt vmcnt(0)
        v_and_b32 v168, v168, v169
        v_and_b32 v170, v170, v171
        v_and_b32 v168, v168, v170
        v_cmp_ne_u32 vcc, 1, v168
        s_cmp_gt_u32 s60, 0x4000
        s_cbranch_scc1 {Ld}
        s_cbranch_vccnz {Lp}
{Ld}:
        """)
    def layer1(fn):
        L1 = a.label("l1")
        a.e(f"s_cmp_eq_u32 s{sL}, 0\ns_cbranch_scc1 {L1}")
        vm = a.vm
        fn()
        a.vm = vm
        a.e(f"{L1}:")
    def phase(lp, first=False, lastit=False, boff=0):
        u, p = divmod(lp, 4)
        Sc = SA if (p & 1) == 0 else SB; Sn = SB if (p & 1) == 0 else SA
        Oc = OA + 16 * p; Op = OA + 16 * ((p - 1) & 3)
        for tok in scheds[p].split():
            if lastit and u == 1 and (tok in ("rK", "rV", "W0") or (tok == "QK" and p == 3)):
                continue
            if tok == "QK":
                a.e(mfma(Sn, KF + 4 * ((u if p < 3 else u + 1) & 1), QA + 4 * ((p + 1) & 3), "0"))
            elif tok == "PV1":
                a.e(mfma(Oc, VF + 8 * u, P, "0" if first and u == 0 else None))
                if lastit and lp >= 6: a.e("s_nop 0"); owrite(lp - 5)
            elif tok == "PV2p":
                if not (first and lp == 0): a.e(mfma(Op, VF + 8 * ((u - 1 if p == 0 else u) & 1) + 4, P + 4))
            elif tok[0] == "E": i = int(tok[1:]); a.e(f"v_exp_f32 v{Sc+i}, v{Sc+i}")
            elif tok[0] == "C": i = int(tok[1:]); a.e(f"v_cvt_pk_bf16_f32 v{P+i}, v{Sc+2*i}, v{Sc+2*i+1}")
            elif tok == "rK": rdK(1 - u, boff + (16384 if u else 2048))
            elif tok == "rV": rdV(1 - u, boff + (16384 if u else 2048))
            elif tok[0] == "W": a.e(f"s_waitcnt lgkmcnt({tok[1:]})")
    def adv():
        a.e(f"v_add_u32 v{vK}, 0x4000, v{vK}\nv_add_u32 v{vV}, 0x4000, v{vV}")
    def cold_block(label, back, fn):
        lines = a.capture(fn)
        a.cold.append(f"{label}:\n" + "\n".join(lines) + f"\ns_branch {back}")
    def young_cold(fn):
        Lc = a.label("yc"); Lb = a.label("yb")
        a.e(f"s_cmp_ge_u32 s{sW}, 4\ns_cbranch_scc1 {Lc}\n{Lb}:")
        cold_block(Lc, Lb, lambda: (a.e("s_setprio 3"), fn(), a.e("s_setprio 0")))
    for lp in range(8):
        if lp == 0:
            a.e("s_waitcnt vmcnt(2)")
            young_cold(lambda: (a.e("s_mov_b32 s62, 1"), poll(a, 53, "0xffff", 62, wide=False), kv_issue(1), xsetup()))
        if lp == 2:
            Lo = a.label("old")
            a.e(f"s_cmp_ge_u32 s{sW}, 4\ns_cbranch_scc1 {Lo}\ns_waitcnt vmcnt(0)\n{Lo}:")
        if lp == 3:
            res_load(a)
        if lp == 6:
            a.e("s_waitcnt vmcnt(0)"); a.bar()
            young_cold(lambda: (kv_issue(2), layer0(a, lambda: [(a.e(f"s_sub_u32 s76, s{sW}, {4*h}"), bg_issue(a, 76, True)) for h in range(2)])))
        phase(lp, first=True)
    adv()
    def cpf():
        Lpc = a.label("pc")
        a.e(f"""
        s_getpc_b64 s[60:61]
{Lpc}:
        s_sub_u32 s60, s60, {Lpc} - L_wo_start
        s_subb_u32 s61, s61, 0
        s_lshl_b32 s62, s{sJ}, 2
        s_lshr_b32 s63, s{sLW}, 10
        s_add_u32 s62, s62, s63
        s_lshl_b32 s62, s62, 8
        s_min_u32 s62, s62, L_code_end - L_wo_start - 256
        v_add_u32 v166, s62, v{vL4}
        global_load_dword v165, v166, s[60:61]
        """)
    L_loop = a.label("aloop"); L_w = a.label("aw")
    a.e(f"s_mov_b32 s56, 1\ns_mul_i32 s57, s{sL}, 5\ns_sub_u32 s58, 1, s{sL}\n{L_loop}:")
    for lp in range(16):
        if lp == 6:
            a.e(f"""
            s_waitcnt vmcnt(16)
            s_cmp_lg_u32 s56, s57
            s_cbranch_scc0 {L_w}
            s_waitcnt vmcnt(8)
            s_cmp_lg_u32 s56, s58
            s_cbranch_scc0 {L_w}
            s_waitcnt vmcnt(0)
{L_w}:
            s_barrier
            """)
            a.nbar += 3
            def ev():
                L3 = a.label("e3"); L5 = a.label("e5"); Le = a.label("ee")
                a.e(f"s_cmp_eq_u32 s56, 3\ns_cbranch_scc1 {L3}\ns_cmp_eq_u32 s56, 5\ns_cbranch_scc1 {L5}")
                kv_issue(2)
                layer0(a, lambda: [a.e("s_waitcnt vmcnt(8)")] + [(a.e(f"s_sub_u32 s76, s{sW}, {4*h}"), bg_issue(a, 76, False), bg_pack(a, 76)) for h in range(2)] + ([a.e("s_waitcnt vmcnt(0)"), bg_signal(a)] if OPT['bgs'] == 'a' else []))
                a.e(f"s_branch {Le}\n{L3}:")
                if OPT['bgs'] == 'b': layer0(a, lambda: bg_signal(a))
                kv_issue(2)
                if OPT["bg30"]:
                    layer0(a, bgpoll)
                    [dma_chunk(a, c) for c in early]
                else:
                    layer1(lambda: [dma_chunk(a, c) for c in early])
                if OPT['pw_on']: layer0(a, lambda: fast_only(a, lambda: prewrite(a)))
                a.e(f"s_branch {Le}\n{L5}:")
                if OPT['wold'] in 'yb': fast_only(a, lambda: warm_attn(a))
                layer0(a, cpf)
                if not OPT["bg30"]: layer0(a, lambda: (bgpoll(), [dma_chunk(a, c) for c in early]))
                prefetch()
                a.e(f"{Le}:")
            young_cold(ev)
        phase(lp % 8, boff=16384 * (lp // 8))
    a.e(f"v_add_u32 v{vK}, 0x8000, v{vK}\nv_add_u32 v{vV}, 0x8000, v{vV}\ns_add_u32 s56, s56, 2\ns_cmp_lt_u32 s56, 7\ns_cbranch_scc1 {L_loop}")
    for lp in range(8):
        if lp == 4:
            Lo = a.label("old")
            a.e(f"s_cmp_ge_u32 s{sW}, 4\ns_cbranch_scc1 {Lo}")
            xsetup()
            if OPT['wold'] in 'ob': fast_only(a, lambda: warm_attn(a))
            a.e(f"{Lo}:")
        phase(lp, lastit=True)
    a.e("s_setprio 0\ns_nop 0")
    a.e(mfma(OA + 48, VF + 8 + 4, P + 4))
    a.stamp(6)
    a.e("s_nop 11")
    owrite(3)
    a.e("s_waitcnt vmcnt(0) lgkmcnt(0)")
    a.bar()
    for i in (1, 2, 3):
        O_ = OA + 16 * i; o = (i - 1) * 2304
        a.e(f"ds_read_b128 {R(O_)}, v{XA_+2*i} offset:{o}\nds_read_b128 {R(O_+4)}, v{XA_+2*i} offset:{o+1024}\nds_read_b32 v{O_+8}, v{XA_+2*i+1} offset:{o+2048}")
    O = OA
    for i in (1, 2, 3):
        a.e(f"s_waitcnt lgkmcnt({9 - 3*i})")
        for r in range(4):
            a.e(f"v_pk_add_f32 v[{O+2*r}:{O+2*r+1}], v[{O+2*r}:{O+2*r+1}], v[{O+16*i+2*r}:{O+16*i+2*r+1}]")
        a.e(f"v_add_f32 v{O+8}, v{O+8}, v{O+16*i+8}")
    def finish():
        a.e(f"v_rcp_f32 v{TMP+5}, v{O+8}\ns_nop 0")
        for i in range(8):
            a.e(f"v_mul_f32 v{SB+i}, v{O+i}, v{TMP+5}")
        for i in range(4):
            a.e(f"v_cvt_pk_bf16_f32 v{SB+8+i}, v{SB+2*i}, v{SB+2*i+1}")
        stores(a, [f"buffer_store_dwordx4 {R(SB+8)}, v{vL16}, s[8:11], s48 offen"])
    a.vm = 0
    finish()
    st = a.vm - 1
    L_fin = a.label("afin")
    a.e(f"""
    v_max3_f32 v{TMP}, abs(v{O}), abs(v{O+1}), abs(v{O+2})
    v_max3_f32 v{TMP}, v{TMP}, abs(v{O+3}), abs(v{O+4})
    v_max3_f32 v{TMP}, v{TMP}, abs(v{O+5}), abs(v{O+6})
    v_add_f32 v{TMP+1}, v{O}, v{O+1}
    v_add_f32 v{TMP+2}, v{O+2}, v{O+3}
    v_add_f32 v{TMP+3}, v{O+4}, v{O+5}
    v_add_f32 v{TMP+4}, v{O+6}, v{O+7}
    v_max_f32 v{TMP}, v{TMP}, abs(v{O+7})
    v_add_f32 v{TMP+1}, v{TMP+1}, v{TMP+2}
    v_add_f32 v{TMP+3}, v{TMP+3}, v{TMP+4}
    v_add_f32 v{TMP+1}, v{TMP+1}, v{TMP+3}
    s_mov_b32 s50, {f32(2.0**-80)}
    s_mov_b32 s51, {f32(2.0**80)}
    s_mov_b32 s52, {f32(2.0**120)}
    v_cmp_le_f32 s[54:55], s50, v{O+8}
    v_cmp_ge_f32 s[56:57], s51, v{O+8}
    v_cmp_ge_f32 s[58:59], s52, v{TMP}
    v_cmp_o_f32 vcc, v{TMP+1}, v{TMP+1}
    s_nop 3
    s_and_b64 s[54:55], s[54:55], s[56:57]
    s_and_b64 s[58:59], s[58:59], vcc
    s_and_b64 s[54:55], s[54:55], s[58:59]
    s_cmp_eq_u64 s[54:55], -1
    s_cbranch_scc1 {L_fin}
    """)
    L_mx = a.label("amx"); L_re = a.label("are")
    a.e(f"""
    v_mov_b32 v{TMP}, 0xff800000
    s_mov_b32 s46, 0
    s_mov_b32 s47, s35
{L_mx}:
    buffer_load_dwordx4 {R(KF)}, v{vL16}, s[8:11], s47 offen sc1
    s_waitcnt vmcnt(0)
    """)
    a.e(mfma(SA, KF, QA, "0"))
    a.e("s_nop 15")
    for i in range(8):
        a.e(f"v_max3_f32 v{TMP}, v{TMP}, v{SA+2*i}, v{SA+2*i+1}")
    a.e(f"""
    s_add_u32 s47, s47, 2048
    s_add_u32 s46, s46, 1
    s_cmp_lt_u32 s46, 64
    s_cbranch_scc1 {L_mx}
    v_mov_b32 v{TMP+1}, v{TMP}
    s_nop 1
    v_permlane32_swap_b32 v{TMP}, v{TMP+1}
    s_nop 1
    v_max_f32 v{TMP}, v{TMP}, v{TMP+1}
    s_mov_b32 s46, 0
    s_mov_b32 s47, s35
    """)
    for i in range(16):
        a.e(f"v_sub_f32 v{C16+i}, 0, v{TMP}\nv_mov_b32 v{O+i}, 0")
    a.e(f"""
{L_re}:
    buffer_load_dwordx4 {R(KF)}, v{vL16}, s[8:11], s47 offen sc1
    s_mov_b64 exec, s[44:45]
    buffer_load_dwordx4 {R(VF)}, v{TMP+7}, s[8:11], s47 offen sc1
    buffer_load_dwordx4 {R(VF+4)}, v{TMP+7}, s[8:11], s47 offen offset:512 sc1
    s_mov_b64 exec, -1
    s_waitcnt vmcnt(0)
    """)
    a.e(mfma(SA, KF, QA, R(C16, 16)))
    a.e("s_nop 15")
    for i in range(16):
        a.e(f"v_exp_f32 v{SA+i}, v{SA+i}")
    a.e("s_nop 0")
    for i in range(8):
        a.e(f"v_cvt_pk_bf16_f32 v{P+i}, v{SA+2*i}, v{SA+2*i+1}")
    a.e("s_nop 1")
    a.e(mfma(O, VF, P))
    a.e(mfma(O, VF + 4, P + 4))
    a.e(f"""
    s_add_u32 s47, s47, 2048
    s_add_u32 s46, s46, 1
    s_cmp_lt_u32 s46, 64
    s_cbranch_scc1 {L_re}
    s_nop 15
    """)
    vm = a.vm
    finish()
    a.vm = vm
    a.e(f"s_waitcnt vmcnt(0)\n{L_fin}:")
    a.e(f"s_add_u32 s61, s{sFB}, 2\ns_lshr_b32 s62, s{sW10}, 8\nv_mov_b32 v2, s61\ns_add_u32 s62, s62, s{sMYF}\ns_mov_b64 exec, 1\ns_waitcnt vmcnt(0)")
    a.stamp(7)
    a.rstamp(27)
    stores(a, [f"buffer_store_dword v2, v{vZ}, s[8:11], s62 offen"])
    a.e("s_mov_b64 exec, -1")
    a.vm = 0
    by_role(a, lambda: None, lambda: [dma_chunk(a, c) for c in late])

def stage_proj(a, CH, bpos, need, H, src, src_tb_bytes, res, dst, stat, dep_mask, dep_val, sig_val, issue, final_ok, st0):
    ACC, FR, TMP, TOK, NT, D, WR = 12, 44, 84, 100, int(OPT['pnt']), int(OPT['pD']), 192
    KEEP, SEND = ACC + 16, ACC
    XC = XCH if not final_ok else 48 * KB
    vA = 92
    if True:
        def pl():
            if dep_mask == "all":
                m = "-1"
            else:
                a.e(f"s_bfe_u32 s63, s{sJ}, 0x10001\ns_lshl_b32 s63, 0x15555555, s63")
                m = "s63"
            a.e(f"s_add_u32 s62, s{sFB}, {dep_val}")
            poll(a, sGFL, m, 62, wide=8 if dep_mask == "all" else True)
    def comp():
        a.e(f"""
        s_and_b32 s39, s{sW}, 1
        s_lshr_b32 s35, s{sW}, 1
        s_lshl_b32 s32, s{sG}, 3
        s_and_b32 s33, s{sJ}, 3
        s_lshl_b32 s33, s33, 1
        s_add_u32 s32, s32, s33
        s_add_u32 s32, s32, s39
        s_lshr_b32 s33, s{sJ}, 2
        s_mul_i32 s34, s32, {src_tb_bytes}
        s_mul_i32 s40, s35, {H*1024}
        s_add_u32 s34, s34, s40
        s_add_u32 s34, s34, s{sLB}
        s_add_u32 s34, s34, {src}
        s_lshl_b32 s36, s33, 1
        s_add_u32 s36, s36, s35
        s_lshl_b32 s37, s32, 15
        s_lshl_b32 s40, s36, 11
        s_add_u32 s37, s37, s40
        s_mul_i32 s40, s35, 3072
        s_lshl_b32 s41, s35, 10
        s_add_u32 s41, s41, 1024
        v_add_u32 v{vA}, s40, v{vL16}
        v_add_u32 v{vA+1}, s40, v{vW1}
        v_add_u32 v{vA+2}, s40, v{vW2}
        v_add_u32 v{vA+3}, s41, v{vL16}
        v_add_u32 v{vA+4}, s41, v{vW1}
        v_add_u32 v{vA+5}, s41, v{vW2}
        s_lshl_b32 s42, s{sW}, 12
        s_xor_b32 s43, s42, 0x2000
        s_add_u32 s42, s42, {XC}
        s_add_u32 s43, s43, {XC}
        v_add_u32 v{TMP}, s42, v{vL16}
        v_add_u32 v{TMP+1}, s43, v{vL16}
        s_lshl_b32 s44, s32, 12
        s_lshr_b32 s45, s36, 2
        s_lshl_b32 s45, s45, 10
        s_add_u32 s44, s44, s45
        s_and_b32 s45, s36, 3
        s_lshl_b32 s45, s45, 2
        s_add_u32 s44, s44, s45
        {f's_add_u32 s44, s44, s{sSN}' if final_ok else f's_add_u32 s44, s44, s{sLB}'}
        {'' if final_ok else f's_add_u32 s44, s44, {STB}'}
        {f's_add_u32 s37, s37, s{sXN}' if final_ok else f's_add_u32 s37, s37, s{sLB}'}
        {'' if final_ok else f's_add_u32 s37, s37, {XB}'}
        """)
        regch = None
        if final_ok:
            regch = 9
        for r in range(8):
            a.e(f"v_lshlrev_b32 v{KEEP+2*r}, 16, v{RS+r}\nv_and_b32 v{KEEP+2*r+1}, 0xffff0000, v{RS+r}")
        if OPT['dw0'] and final_ok: only_wave0(a, pl)
        a.bar()
        a.stamp(st0)
        tp = TokPipe(a, TOK, NT, H, 34)
        sched = [(ks, f) for ks in range(H) for f in range(2)]
        frags = []
        for j, f in sched:
            i = 1 - f
            frags.append(("reg", WR + 8 * (j % 4) + 4 * (1 - i)) if j // 4 == regch else lds_win(CH[j // 4].lds * KB + (j % 4) * 4 * KB, (vA + 3 * i, vA + 3 * i + 1, vA + 3 * i + 2)))
        fp = FragPipe(a, FR, D, frags)
        def em(ks, f, w, t):
            a.e(mfma(ACC + 16 * f, w, t, "0" if ks == 0 and f == 0 else None))
        gemm_loop(a, fp, tp, sched, set(8 * c for c in bpos), em, tok0=(int(OPT['ptok0']) if final_ok else int(OPT['wtok0'])), tok_at=set(range(0, 2 * H, 2)))
        a.stamp(st0 + 1)
        RCV = SEND
        a.e("s_nop 10")
        for q in range(4):
            a.e(f"ds_write_b128 v{TMP}, {R(SEND+4*q)} offset:{1024*q}")
        a.e("s_waitcnt lgkmcnt(0)")
        if OPT["hstamps"]: a.stamp(18 if H == 16 else 22)
        a.bar()
        if OPT["hstamps"]: a.stamp(19 if H == 16 else 23)
        for q in range(4):
            a.e(f"ds_read_b128 {R(SEND+4*q)}, v{TMP+1} offset:{1024*q}")
        PK = RS
        for q in range(4):
            a.e(f"s_waitcnt lgkmcnt({3-q})")
            for r in range(2 * q, 2 * q + 2):
                a.e(f"v_pk_add_f32 v[{KEEP+2*r}:{KEEP+2*r+1}], v[{KEEP+2*r}:{KEEP+2*r+1}], v[{RCV+2*r}:{RCV+2*r+1}]")
            for r in range(2 * q, 2 * q + 2):
                a.e(f"v_cvt_pk_bf16_f32 v{PK+r}, v{KEEP+2*r}, v{KEEP+2*r+1}")
        L_fin = a.label("pfin"); L_dn = a.label("pdn")
        if final_ok:
            a.e(f"s_cmp_lg_u32 s{sL}, 0\ns_cbranch_scc1 {L_fin}")
        stores(a, [f"buffer_store_dwordx4 {R(PK)}, v{vL16}, s[8:11], s37 offen",
                   f"buffer_store_dwordx4 {R(PK+4)}, v{vL16}, s[8:11], s37 offen offset:1024"])
        stats_f32(a, KEEP, TMP + 2, TMP + 4)
        stores(a, [f"buffer_store_dword v{TMP+2}, v{vL16}, s[8:11], s44 offen"])
        if final_ok:
            a.e(f"""
            s_branch {L_dn}
{L_fin}:
            v_and_b32 v{TMP}, 31, v{vL}
            v_lshlrev_b32 v{TMP}, 10, v{TMP}
            v_lshrrev_b32 v{TMP+1}, 5, v{vL}
            v_lshl_add_u32 v{TMP}, v{TMP+1}, 4, v{TMP}
            s_lshl_b32 s44, s32, 15
            s_lshl_b32 s45, s36, 6
            s_add_u32 s44, s44, s45
            v_permlane32_swap_b32 v{PK}, v{PK+2}
            v_permlane32_swap_b32 v{PK+1}, v{PK+3}
            v_permlane32_swap_b32 v{PK+4}, v{PK+6}
            v_permlane32_swap_b32 v{PK+5}, v{PK+7}
            buffer_store_dwordx4 {R(PK)}, v{TMP}, s[12:15], s44 offen
            buffer_store_dwordx4 {R(PK+4)}, v{TMP}, s[12:15], s44 offen offset:32
            {'' if OPT['stamp'] else 's_endpgm'}
{L_dn}:
            """)
        if OPT["hstamps"]: a.stamp(20 if H == 16 else 24)
        a.bar()
        if OPT["hstamps"]: a.stamp(21 if H == 16 else 25)
        signal_wave(a, sig_val, st0 + 2)
    def load():
        if not (OPT['dw0'] and final_ok): only_wave0(a, pl, int(OPT['pw']))
        if final_ok and OPT['wb'] != '0':
            def wb():
                L = a.label("wb")
                a.e(f"s_cmp_eq_u32 s{sL}, 0\ns_cbranch_scc1 {L}\ns_cmp_ge_u32 s{sJ}, {OPT['wb']}\ns_cbranch_scc1 {L}\nbuffer_wbl2 sc1\n{L}:")
            only_wave0(a, wb, int(OPT['pw']))
        loader_stage(a, need + [None, None], issue, prio=0)
    by_role(a, comp, load)

def dep_half_poll(a, sj, val):
    a.e(f"s_and_b32 s63, s{sj}, 1\ns_lshl_b32 s63, s63, 1\ns_lshl_b32 s63, 0x33333333, s63\ns_add_u32 s62, s{sFB}, {val}")
    poll(a, sGFL, "s63", 62)

def stage_gu(a, G, need, issue):
    ACC, FR, ST, CSO, TMP, TKO, TOK, NT, D = 8, 104, 128, 144, 168, 180, 184, 13, 6
    def comp():
        a.e(f"""
        s_lshl_b32 s32, s{sG}, 3
        s_and_b32 s33, s{sJ}, 1
        s_lshl_b32 s33, s33, 2
        s_add_u32 s32, s32, s33
        s_add_u32 s32, s32, s{sW}
        s_lshr_b32 s33, s{sJ}, 1
        s_lshl_b32 s34, s32, 15
        s_add_u32 s34, s34, s{sLB}
        s_add_u32 s34, s34, {XB}
        s_lshl_b32 s35, s32, 12
        s_add_u32 s35, s35, s{sLB}
        s_add_u32 s35, s35, {STB}
        s_min_u32 s38, s33, 14
        s_mul_i32 s36, s38, 1536
        s_add_u32 s37, s36, {CSPU}
        s_add_u32 s36, s36, {CSPG}
        s_mul_i32 s38, s32, {86*KB}
        s_mul_i32 s39, s33, 6144
        s_add_u32 s38, s38, s39
        s_add_u32 s38, s38, s{sLB}
        s_add_u32 s38, s38, {HF}
        """)
        a.e(f"v_and_b32 v{TMP+9}, 31, v{vL}\nv_lshlrev_b32 v{TMP+9}, 2, v{TMP+9}\nv_lshrrev_b32 v{TMP+1}, 5, v{vL}\nv_lshl_add_u32 v{TMP+9}, v{TMP+1}, 8, v{TMP+9}\ns_mov_b32 s59, 0x05040100")
        for f in range(6):
            a.e(f"v_mov_b32 v{CSO+4*f+3}, 0")
        L_idle = a.label("gidle"); L_join = a.label("gjoin")
        if OPT["gidle"]:
            a.e(f"s_cmp_ge_u32 s{sJ}, 30\ns_cbranch_scc1 {L_idle}")
        a.bar()
        a.stamp(11)
        L_short = a.label("gshort")
        if OPT["gshort"]:
            a.e(f"s_cmp_ge_u32 s{sJ}, 28\ns_cbranch_scc1 {L_short}")
        tp = TokPipe(a, TOK, NT, 32, 34)
        last = [None]
        def ld(s_):
            return lambda: last.__setitem__(0, a.vmem(s_))
        aux = [ld(f"buffer_load_dwordx4 {R(ST+4*q)}, v{vL16}, s[8:11], s35 offen offset:{1024*q} sc1") for q in range(4)]
        aux += [ld(f"buffer_load_dword v{CSO+4*(2*sub+gu)+e}, v{TMP+9}, s[8:11], s{36+gu} offen offset:{512*sub + 128*e} sc1") for sub in range(3) for gu in range(2) for e in range(2)]
        vMean, vRstd = TMP, TMP + 2
        def fill_fn(nf=6):
            a.wait_vm(last[0])
            stats_finish(a, ST, vMean, vRstd, TMP + 1)
            split_hilo(a, vMean, TKO, TMP + 1, "tok")
            for f in range(nf):
                a.e(f"v_perm_b32 v{CSO+4*f+2}, v{CSO+4*f+1}, v{CSO+4*f}, s59")
            a.e(f"v_mul_f32 v{TMP+4}, v{vRstd}, v{vRstd}\nv_mul_f32 v{TMP+5}, v{vRstd}, v{vRstd}")
            for f in range(nf):
                a.e(mfma(ACC + 16 * f, CSO + 4 * f, TKO))
        TL = int(OPT['gTL'])
        sched = [(ks, f) for ks in range(32 - TL) for f in range(6)] + [(ks, 2 * pr + f) for pr in range(3) for ks in range(32 - TL, 32) for f in range(2)]
        frags = [lds_win(G[ks // 4].lds * KB + ((ks % 4) * 6 + f) * KB) for ks, f in sched]
        fp = FragPipe(a, FR, D, frags)
        def em(ks, f, w, t):
            a.e(mfma(ACC + 16 * f, w, t, "0" if ks == 0 else None))
        def epi(sub, packed):
            Gr = ACC + 32 * sub; U = Gr + 16
            if packed:
                for r in range(8):
                    a.e(f"v_pk_mul_f32 v[{Gr+2*r}:{Gr+2*r+1}], v[{Gr+2*r}:{Gr+2*r+1}], v[{TMP+4}:{TMP+5}]")
                for r in range(8):
                    a.e(f"v_pk_mul_f32 v[{Gr+2*r}:{Gr+2*r+1}], v[{Gr+2*r}:{Gr+2*r+1}], v[{U+2*r}:{U+2*r+1}]")
            else:
                for r in range(16):
                    a.e(f"v_mul_f32 v{Gr+r}, v{Gr+r}, v{TMP+4}")
                for r in range(16):
                    a.e(f"v_mul_f32 v{Gr+r}, v{Gr+r}, v{U+r}")
            for r in range(8):
                a.e(f"v_cvt_pk_bf16_f32 v{Gr+r}, v{Gr+2*r}, v{Gr+2*r+1}")
            def st():
                L = a.label("gsk")
                a.e(f"s_cmp_ge_u32 s33, {15 if sub == 0 else 14}\ns_cbranch_scc1 {L}\ns_add_u32 s39, s38, {2048*sub}")
                stores(a, [f"buffer_store_dwordx4 {R(Gr)}, v{vL16}, s[8:11], s39 offen",
                           f"buffer_store_dwordx4 {R(Gr+4)}, v{vL16}, s[8:11], s39 offen offset:1024"])
                a.e(f"{L}:")
            if packed: st()
            else: a.group(st)
        P0 = 6 * (32 - TL)
        gemm_loop(a, fp, tp, sched, set(range(24, P0 + 1, 24)), em, aux=aux, tok_at=set(range(1, P0, 3)), **{'A': dict(tok0=6), 'B': dict(tok0=3, aux_late=True, aux_at=set(range(0, 48, 3))), 'C': dict(tok0=3, aux_late=True, aux_at=set(range(2, 42, 4))), 'D': dict(tok0=3)}[OPT['guv']],
                  fills={60: lambda: a.capture(fill_fn), P0 + 2 * TL + 3: lambda: a.capture(lambda: epi(0, False)),
                         P0 + 4 * TL + 3: lambda: a.capture(lambda: epi(1, False))}, per_gap=(int(OPT['gpg']), P0, int(OPT['gpt'])), fgrp=int(OPT['gfg']))
        a.e(f"{L_join}:")
        cold = [f"{L_idle}:", f"v_lshlrev_b32 v8, 7, v{vL}", f"s_and_b32 s40, s{sJ}, 1", "s_lshl_b32 s40, s40, 2", f"s_add_u32 s40, s40, s{sW}",
                f"s_mul_i32 s41, s40, {172*KB}", f"s_add_u32 s41, s41, {WPD + 64*KB}", "s_barrier"]
        Lq = a.label("gq"); Lq0 = a.label("gq0")
        cold += [f"s_cmp_eq_u32 s{sL}, 0", f"s_cbranch_scc1 {Lq0}"]
        for i in range(int(OPT["gd"])):
            cold += [f"buffer_load_dword v9, v8, s[8:11], s41 offen", "s_add_u32 s41, s41, 8192"]
        cold += [f"s_branch {Lq}", f"{Lq0}:", f"s_mul_i32 s41, s40, {192*KB}", f"s_add_u32 s41, s41, {WPQ}", f"s_add_u32 s42, s41, {96*KB}"]
        for i in range(int(OPT["gq"])):
            cold += ["buffer_load_dword v9, v8, s[8:11], s41 offen", "s_add_u32 s41, s41, 8192", "buffer_load_dword v9, v8, s[8:11], s42 offen", "s_add_u32 s42, s42, 8192"]
        cold += [f"{Lq}:"] + ["s_barrier"] * 6 + [f"s_branch {L_join}"]
        a.cold.append("\n".join(cold))
        def short():
            a.vm = 0
            tp2 = TokPipe(a, TOK, NT, 32, 34)
            sched2 = [(ks, f) for ks in range(32) for f in range(2)]
            fp2 = FragPipe(a, FR, D, [lds_win(G[ks // 4].lds * KB + ((ks % 4) * 6 + f) * KB) for ks, f in sched2])
            aux2 = [ld(f"buffer_load_dwordx4 {R(ST+4*q)}, v{vL16}, s[8:11], s35 offen offset:{1024*q} sc1") for q in range(4)]
            aux2 += [ld(f"buffer_load_dwordx2 v[{CSO+4*gu}:{CSO+4*gu+1}], v{TMP+9}, s[8:11], s{36+gu} offen sc1") for gu in range(2)]
            gemm_loop(a, fp2, tp2, sched2, set(range(8, 49, 8)), em, tok0=8, aux=aux2, tok_at=set(range(0, 64, 2)),
                      fills={33: lambda: a.capture(lambda: fill_fn(2))}, per_gap=4)
            a.e("s_nop 11")
            epi(0, True)
            signal_wave(a, 4)
            Lq = a.label("gq"); Lq0 = a.label("gq0")
            a.e(f"""
            v_lshlrev_b32 v8, 7, v{vL}
            s_and_b32 s40, s{sJ}, 1
            s_lshl_b32 s40, s40, 2
            s_add_u32 s40, s40, s{sW}
            s_cmp_eq_u32 s{sL}, 0
            s_cbranch_scc1 {Lq0}
            s_mul_i32 s41, s40, {172*KB}
            s_add_u32 s41, s41, {WPD + 64*KB + 8192*int(OPT['gd'])}
            """)
            for i in range(int(OPT["gd2"])):
                a.e("buffer_load_dword v9, v8, s[8:11], s41 offen\ns_add_u32 s41, s41, 8192")
            a.e(f"s_branch {Lq}\n{Lq0}:\ns_mul_i32 s41, s40, {192*KB}\ns_add_u32 s41, s41, {WPQ + 8192*int(OPT['gq'])}\ns_add_u32 s42, s41, {96*KB}")
            for i in range(int(OPT["gq2"])):
                a.e("buffer_load_dword v9, v8, s[8:11], s41 offen\ns_add_u32 s41, s41, 8192\nbuffer_load_dword v9, v8, s[8:11], s42 offen\ns_add_u32 s42, s42, 8192")
            a.e(f"{Lq}:")
        if OPT["gshort"]:
            a.cold.append(f"{L_short}:\n" + "\n".join(a.capture(short)) + f"\ns_branch {L_join}")
        a.stamp(12)
        a.e(f"s_lshr_b32 s40, s{sW}, 1\ns_lshl_b32 s41, s40, 10\ns_mul_i32 s40, s40, 3072\ns_add_u32 s41, s41, 1024")
        for j in range(4):
            a.e(f"s_add_u32 s46, s{sWD}, {(9*16 + j*4)*KB}\ns_add_u32 s47, s46, s41\ns_add_u32 s46, s46, s40")
            a.vmem(f"buffer_load_dwordx4 {R(192+8*j)}, v{vL16}, s[8:11], s47 offen")
            a.vmem(f"buffer_load_dwordx4 {R(192+8*j+4)}, v{vL16}, s[8:11], s46 offen")
        epi(2, True)
        L_done = a.label("gdone")
        a.e(f"{L_done}:")
        a.bar()
        signal_wave(a, 4, 13)
    def load():
        only_wave0(a, lambda: dep_half_poll(a, sJ, 3), int(OPT['pw']))
        loader_stage(a, need + [None], issue)
    by_role(a, comp, load)

def gen_mega(a):
    name = NAME + "_kernel"
    kernel_begin(a, name)
    L_end = a.label("end")
    a.e(f"""
    s_cmp_ge_u32 s2, 256
    s_cbranch_scc1 {L_end}
    s_load_dwordx16 s[36:51], s[0:1], 0
    s_load_dwordx4 s[52:55], s[0:1], {A_DBG}
    s_getpc_b64 s[60:61]
L_pc0:
    s_lshr_b32 s{sJ}, s2, 3
    s_lshl_b32 s62, s{sJ}, 11
    s_min_u32 s62, s62, L_code_end - L_pc0 - 2048
    v_lshl_add_u32 v2, v0, 2, s62
    global_load_dword v240, v2, s[60:61]
    v_and_b32 v{vL}, 63, v0
    v_lshrrev_b32 v2, 6, v0
    v_lshlrev_b32 v{vL16}, 4, v{vL}
    v_readfirstlane_b32 s{sW}, v2
    s_getreg_b32 s70, hwreg(HW_REG_XCC_ID, 0, 4)
    s_mov_b32 s{sMODE}, 0
    s_mov_b32 s{sREDO}, 0
    s_mov_b32 s{sL}, 0
    s_and_b32 s{sG}, s70, 7
    s_and_b32 s{sLW}, s{sW}, 3
    s_lshl_b32 s{sLW}, s{sLW}, 10
    s_mov_b32 s58, {2*MB}
    s_mov_b32 s59, 0x00020000
    s_mov_b32 s82, {512*3072}
    s_mov_b32 s83, 0x00020000
    s_waitcnt lgkmcnt(0)
    s_mov_b32 s56, s36
    s_mov_b32 s57, s37
    s_mov_b32 s80, s38
    s_mov_b32 s81, s39
    """)
    if OPT["stamp"]:
        a.e("v_mov_b32 v255, 0")
    a.stamp(0)
    if OPT["stamp"]:
        a.e("s_memrealtime s[90:91]\ns_waitcnt lgkmcnt(0)\nv_writelane_b32 v255, s90, 62")
    Q = [Chunk(sWQ, c * 12 * KB, 12, l) for c, l in enumerate([0, 12, 24, 36, 48, 60, 72, 84])]
    WOc = [Chunk(sWO, c * 16 * KB, 16, 16 * c) for c in range(4)]
    G = [Chunk(sWG, c * 24 * KB, 24, l) for c, l in enumerate([92, 116, 68, 0, 24, 92, 116, 68])]
    Dn = [Chunk(sWD, c * 16 * KB, 16 if c < 10 else 12, l) for c, l in enumerate([48, 0, 16, 32, 96, 64, 80, 112, 140, 0, 128])]
    def init():
        L5 = a.label("p5")
        a.e(f"s_cmp_lg_u32 s{sREDO}, 0\ns_cbranch_scc1 {L5}")
        srd(a, 8, 54, WS_USED)
        if int(OPT['wsoff']): a.e(f"s_add_u32 s8, s8, {int(OPT['wsoff'])*MB}\ns_addc_u32 s9, s9, 0")
        srd(a, 12, 50, 2 * MB)
        srd(a, 84, 52, 256)
        a.e(f"""
        v_add_u32 v{vW1}, 0x10000, v{vL16}
        v_add_u32 v{vW2}, 0x20000, v{vL16}
        v_lshlrev_b32 v{vL4}, 2, v{vL}
        v_mov_b32 v{vZ}, 0
        s_mov_b32 s{sLAY}, 0
        s_mov_b32 s{sFB}, 1
        s_lshl_b32 s{sW10}, s{sW}, 10
        v_mov_b32 v{vCN}, {CNT}
        v_lshlrev_b32 v{vL32}, 5, v{vL}
        s_lshr_b32 s60, s{sLW}, 8
        v_mov_b32 v{vWF}, s60
        s_mov_b32 s{sCNT}, 0
        s_lshl_b32 s71, s{sG}, 5
        s_cmp_lg_u32 s{sW}, 0
        s_cbranch_scc1 {L5}
        ds_write_b32 v{vCN}, v{vZ}
        ds_write_b32 v{vCN}, v{vZ} offset:4
        s_and_b32 s72, s2, 127
        s_lshl_b32 s72, s72, 7
        s_add_u32 s72, s72, {FLG}
        s_mov_b32 exec_hi, 0
        buffer_store_dword v{vZ}, v{vL4}, s[8:11], s72 offen sc1
        s_mov_b64 exec, -1
{L5}:
        """)
    def warm():
        Lw = a.label("wm")
        a.e(f"""
        s_or_b32 s60, s{sW}, s{sREDO}
        s_cmp_lg_u32 s60, 0
        s_cbranch_scc1 {Lw}
        s_lshl_b32 s72, 1, s{sJ}
        s_lshr_b32 s73, s70, 3
        s_cmp_lg_u32 s73, 0
        s_cselect_b32 s73, 0x01000000, 0
        s_or_b32 s73, s73, 0x100
        v_mov_b32 v200, s72
        v_mov_b32 v201, s73
        s_mov_b64 exec, 1
        s_waitcnt vmcnt(2)
        buffer_atomic_add_x2 v[200:201], v{vZ}, s[84:87], s71 offen sc0 sc1
        s_mov_b64 exec, -1
{Lw}:
        """)
    def ticket():
        Lw = a.label("tp")
        a.e(f"""
        s_or_b32 s60, s{sW}, s{sREDO}
        s_cmp_lg_u32 s60, 0
        s_cbranch_scc1 {Lw}
        s_waitcnt vmcnt(0)
        v_bfe_u32 v2, v201, 8, 16
        v_mov_b32 v200, {XCH}
        s_mov_b64 exec, 1
        ds_write_b32 v200, v2 offset:4
        s_mov_b64 exec, -1
        s_waitcnt lgkmcnt(0)
{Lw}:
        """)
    def roles():
        init()
        a.e(f"""
        s_lshl_b32 s{sGFL}, s{sG}, 10
        s_add_u32 s{sGFL}, s{sGFL}, {GF}
        s_lshl_b32 s{sMYF}, s{sJ}, 5
        s_add_u32 s{sMYF}, s{sMYF}, s{sGFL}
        s_lshr_b32 s76, s{sJ}, 1
        s_mul_i32 s{sWQ}, s76, {96*KB}
        s_add_u32 s{sWQ}, s{sWQ}, {WPQ}
        s_mov_b32 s{sLB}, 0
        s_mov_b32 s{sQB}, {QF0}
        s_mul_i32 s{sXN}, s{sMODE}, {XA + LAY - XB}
        s_add_u32 s{sXN}, s{sXN}, {XB}
        s_mul_i32 s{sSN}, s{sMODE}, {STA + LAY - STB}
        s_add_u32 s{sSN}, s{sSN}, {STB}
        s_min_u32 s76, s76, 14
        s_mul_i32 s{sWG}, s76, {192*KB}
        s_add_u32 s{sWG}, s{sWG}, {WPG}
        s_lshr_b32 s76, s{sJ}, 2
        s_lshl_b32 s{sWO}, s76, 16
        s_add_u32 s{sWO}, s{sWO}, {WPO}
        s_mul_i32 s{sWD}, s76, {172*KB}
        s_add_u32 s{sWD}, s{sWD}, {WPD}
        """)
    L_roles = a.label("roles")
    a.e(f"{L_roles}:")
    stage_qkv0(a, L_roles, warm, ticket, roles)
    L_layer = a.label("layer")
    a.e(f"{L_layer}:")
    def pf_attn():
        a.e(f"""
        v_lshlrev_b32 v164, 7, v{vL}
        s_and_b32 s64, s{sJ}, 1
        s_mul_i32 s64, s64, {32*KB*int(OPT['pfn'])}
        s_add_u32 s64, s64, s{sWG}
        s_mul_i32 s65, s{sLW}, {8*int(OPT['pfn'])}
        s_add_u32 s64, s64, s65
        s_add_u32 s65, s64, 8192
        s_add_u32 s66, s64, 16384
        """)
        for i in range(int(OPT['pfn'])):
            l2_prefetch(a, 165, 164, 64 + i)
    def pf(sbase, share_mask, share_bytes, off, n):
        def fn():
            a.e(f"""
            s_and_b32 s64, s{sJ}, {share_mask}
            s_mul_i32 s64, s64, {share_bytes}
            s_mul_i32 s65, s{sLW}, {share_bytes // 4 // KB}
            s_add_u32 s64, s64, s65
            s_add_u32 s64, s64, s{sbase}
            s_add_u32 s64, s64, {off}
            """)
            for i in range(n):
                a.vmem(f"buffer_load_dwordx4 v[8:11], v{vL16}, s[8:11], s64 offen offset:{i*KB}")
        return fn
    pfd = [pf(sWD, 3, 24 * KB, 80 * KB + i * 2 * KB, 2) for i in range(3)]
    pfq = [(pf(sWQ, 1, 48 * KB, i * 3 * KB, 3),) for i in range(4)]
    pf9 = pf(sWD, 3, 4 * KB, 144 * KB, 1)
    pfD = [pf(sWD, 3, 44 * KB, i * 4 * KB, 4 if i < 2 else 3) for i in range(3)]
    if not OPT["pfd"]: pfd = [lambda: None] * 3
    if not OPT["pfq"]: pfq = [(lambda: None,)] * 4
    stage_attn(a, WOc, [G[0]], pf_attn)
    a.e("L_wo_start:")
    stage_proj(a, WOc, [], [None], 16, OF, 32768, XA, XB, STB, "all", 2, 3, ({0: [G[1], G[2]] + pfq[:int(OPT['wq'])], 2: [G[3], G[4]]} if OPT['g34'] == 'w' else {0: [G[1], G[2]]}), False, 8)
    wh = lambda: warm_h(a)
    last = [Dn[4], Dn[5], Dn[6], Dn[7], Dn[10]]
    plans = {
        'a': {2: [G[5]], 3: [G[6], Dn[8]], 4: [G[7], Dn[0], pfq[0]], 5: [Dn[1], pf9, pfq[1]], 6: [wh, Dn[2], Dn[3], pfq[2], pfq[3]], 7: last},
        'b': {2: [G[5], pfq[0]], 3: [G[6], Dn[8], pfq[1]], 4: [G[7], Dn[0], pfq[2]], 5: [Dn[1], pf9, pfq[3]], 6: [wh, Dn[2], Dn[3]], 7: last},
        'c': {2: [G[5]], 3: [G[6], Dn[8]], 4: [G[7], Dn[0]], 5: [Dn[1], pf9], 6: [wh, Dn[2], Dn[3]], 7: last + [(lambda: None,)]},
        'd': {2: [G[5]], 3: [G[6], Dn[8]], 4: [G[7], Dn[0], pfq[0], pfq[1]], 5: [wh, Dn[1], pf9, pfq[2], pfq[3]], 6: [Dn[2], Dn[3]], 7: last},
    }
    pl_ = dict(plans[OPT['gp']])
    if OPT['g34'] == 'a': pl_[0] = [G[3], G[4]]
    if OPT['g34'] == 'b': pl_[0] = [G[3]]; pl_[1] = [G[4]]
    if OPT['g34'] == 'c': pl_[1] = [G[3], G[4]]
    if OPT['pace'] != 'x':
        for k_ in list(pl_):
            if k_ <= 4:
                pl_[k_] = [(lambda c=c: dma_chunk(a, c, pace=int(OPT['pace']))) if isinstance(c, Chunk) and c in G else c for c in pl_[k_]]
    stage_gu(a, G, G[:6] + [G[6:8]], pl_)
    stage_proj(a, Dn, [3, int(OPT['qb'])], ([Dn[:9] + [Dn[10]], None, None] if not OPT['dneed'] else [Dn[:4] + [Dn[8]], Dn[4:8] + [Dn[10]], None]), 43, HF, 86 * KB, XB, XA + LAY, STA + LAY, "gu", 4, 5,
               {2: [(c,) for c in Q[:4]], 4: [(c,) for c in Q[4:]]}, True, 14)
    L_exit = a.label("exit")
    a.e(f"""
    s_cmp_lg_u32 s{sL}, 0
    s_cbranch_scc1 {L_exit}
    """)
    a.e(f"""
    s_mov_b32 s{sL}, 1
    s_mov_b32 s{sLAY}, {LAY}
    s_mul_i32 s{sLB}, s{sMODE}, {LAY}
    s_mul_i32 s{sQB}, s{sMODE}, {QF1 - HF}
    s_add_u32 s{sQB}, s{sQB}, {HF}
    s_add_u32 s{sFB}, s{sFB}, 5
    """)
    stage_qkv(a, Q)
    a.e(f"s_branch {L_layer}\n{L_exit}:")
    if OPT["stamp"]:
        a.stamp(17)
        a.e(f"""
        s_lshl_b32 s92, s2, 3
        s_add_u32 s92, s92, s{sW}
        s_lshl_b32 s92, s92, 8
        s_add_u32 s92, s92, {DBG}
        s_memrealtime s[90:91]
        s_waitcnt lgkmcnt(0)
        v_writelane_b32 v255, s90, 63
        v_writelane_b32 v255, s{sG}, 30
        v_writelane_b32 v255, s{sJ}, 31
        v_writelane_b32 v255, s{sMODE}, 29
        buffer_store_dword v255, v{vL4}, s[8:11], s92 offen
        """)
    if OPT["hstamp"]:
        Lh = a.label("hs")
        a.e(f"""
        s_cmp_lg_u32 s2, 77
        s_cbranch_scc1 {Lh}
        s_cmp_lg_u32 s{sW}, 0
        s_cbranch_scc1 {Lh}
        s_load_dwordx2 s[84:85], s[0:1], {A_DBG}
        s_mov_b32 s86, 256
        s_mov_b32 s87, 0x00020000
        v_readlane_b32 s60, v255, 0
        v_readlane_b32 s61, v255, 62
        v_readlane_b32 s62, v255, 63
        s_sub_u32 s62, s62, s61
        s_waitcnt lgkmcnt(0)
        v_mov_b32 v2, s62
        s_mov_b64 exec, 1
        buffer_store_dword v2, v{vZ}, s[84:87], 0 offen offset:8
        """)
        for k, sl in enumerate([1, 3, 5, 7, 16, 32+3, 32+5, 32+7, 32+10, 32+13, 32+17]):
            dw = [3, 4, 5, 6, 7, 10, 11, 12, 13, 14, 15][k]
            a.e(f"v_readlane_b32 s61, v255, {sl}\ns_sub_u32 s61, s61, s60\nv_mov_b32 v2, s61\nbuffer_store_dword v2, v{vZ}, s[84:87], 0 offen offset:{4*dw}\ns_nop 1")
        a.e(f"{Lh}:")
    a.e(f"{L_end}:\ns_endpgm")
    for c in a.cold:
        a.e(c)
    a.e("L_code_end:")
    return kd(name, 256, 100)

DOC = '''; Persistent single-launch implementation (one 512-thread workgroup per CU, all 256 co-resident).
;  * 8 groups of 32 workgroups; group = 256 rows.  Roles are (die id read from the hardware register, member index).
;    so die-local hand-offs are only used between workgroups that really share a die.  K/V and repacked weights always
;  * LayerNorm is applied algebraically: rstd * (x @ W - mean * colsum(W)), mean/colsum as an extra hi/lo-split MFMA step.
'''
def build():
    a = Asm()
    k2 = gen_mega(a)
    hdr = DOC + f"; @launch grid=(256,1,1) block=(512,1,1) lds={LDS_BYTES}\n" + '.amdgcn_target "amdgcn-amd-amdhsa--gfx950"\n.text\n'
    return hdr + a.text() + '.section .rodata,"a"\n' + k2

if __name__ == "__main__":
    args = sys.argv[1:]
    out = f"cdna_kernels/{NAME}.s"
    for x in args:
        if x.startswith("--"):
            k, _, v = x[2:].partition("=")
            OPT[k] = v if k in ("force_mode", "wb", "pace", "q0e", "q0up", "wq", "coop") else (v == "" or v == "1") if v in ("", "0", "1") else v
        else:
            out = x
    open(out, "w").write(build())
```
